```python
import torch

def _softmax(x, axis=-1):
    return torch.softmax(x, dim=axis)
def _gelu(x):
    return torch.nn.functional.gelu(x, approximate="tanh")
def _silu(x):
    return torch.nn.functional.silu(x)
def _sigmoid(x):
    return torch.sigmoid(x)
def _layernorm(x, axis=-1, eps=1e-5):
    m = x.mean(dim=axis, keepdim=True)
    v = x.var(dim=axis, keepdim=True, unbiased=False)
    return (x - m) / torch.sqrt(v + eps)
def _scatter_add(tgt, idx, src, axis=0):
    return tgt.clone().index_add_(axis, idx, src)
def _segment_sum(src, seg, n):
    out = torch.zeros((n,) + src.shape[1:], dtype=src.dtype)
    return out.index_add_(0, seg, src)
def _pad(x, pw):
    flat = tuple(v for pair in reversed(pw) for v in pair)
    return torch.nn.functional.pad(x, flat)

kernel_name = 'standalone__grn__sampling'

def setup_inputs():

    _w = (lambda a: (lambda t: t.to(torch.bfloat16) if t.is_floating_point() else t)(torch.as_tensor(a)))
    B, S, D = 512, 32, 640
    return {
        "x": _w((lambda *s: torch.randn(*s, dtype=torch.bfloat16) * 0.05)(B, S, D)),
        "g": _w((lambda *s: torch.randn(*s, dtype=torch.bfloat16) * 0.8)(D) * 0.1),
        "b": _w((lambda *s: torch.randn(*s, dtype=torch.bfloat16) * 0.1)(D) * 0.1),
    }

def reference(x, g, b):
    gx = torch.sqrt((x * x).sum(axis=-2, keepdims=True))
    nx = gx / (gx.mean(axis=-1, keepdims=True) + 1e-6)
    return g * (x * nx) + b + x
```

```python
import sys

HEADER = """; Kernarg layout for this problem (48 bytes, ptrs only, base s[0:1]):
"""

def gen(nw=5, ldf="", stf="", lds=64, remap=0, gbfirst=0, denorm=1):
    L = []
    A = L.append
    nld = 40 // nw
    lanes_per_row = 80 // nw
    lg = 4 if nw == 5 else 3
    A(HEADER.rstrip())
    A(f"; @launch grid=(512,1,1) block=({nw*64},1,1) lds={lds}")
    A('.amdgcn_target "amdgcn-amd-amdhsa--gfx950"')
    A(".text")
    A(".globl standalone__grn__sampling_kernel")
    A(".p2align 8")
    A(".type standalone__grn__sampling_kernel,@function")
    A("standalone__grn__sampling_kernel:")
    A("    s_load_dwordx8 s[4:11], s[0:1], 0        ; x, g, b, out")
    A("    s_cmp_ge_u32 s2, 512")
    A("    s_cbranch_scc1 L_end")
    if remap:
        A("    s_and_b32 s3, s2, 7")
        A("    s_lshl_b32 s3, s3, 6")
        A("    s_lshr_b32 s2, s2, 3")
        A("    s_add_u32 s2, s2, s3")
    A("    s_mul_i32 s3, s2, 40960")
    A("    v_lshrrev_b32 v1, 6, v0")
    A(f"    v_and_b32 v2, {lanes_per_row-1}, v0")
    A("    v_lshlrev_b32 v2, 4, v2")
    A(f"    v_lshl_add_u32 v2, v1, {lg+4}, v2")
    A(f"    v_bfe_u32 v3, v0, {lg}, {6-lg}")
    A(f"    v_mul_u32_u24 v3, {nld*1280}, v3")
    A("    v_add3_u32 v3, v3, v2, s3")
    if nld > 4:
        A("    v_add_u32 v4, 5120, v3")
    XB = 16
    ACC = XB + 8 * nld
    G = ACC + 8
    B = G + 8
    NV = B + 8
    def addr(i):
        return ("v3" if i < 4 else "v4"), 1280 * (i % 4)
    A("    s_waitcnt lgkmcnt(0)")
    def gb_loads():
        A(f"    global_load_dwordx4 v[{G+4}:{G+7}], v2, s[6:7]")
        A(f"    global_load_dwordx4 v[{B+4}:{B+7}], v2, s[8:9]")
    if gbfirst:
        gb_loads()
    for i in range(nld):
        a, o = addr(i)
        b = XB + 8 * i
        A(f"    global_load_dwordx4 v[{b+4}:{b+7}], {a}, s[4:5] offset:{o} {ldf}".rstrip())
    if not gbfirst:
        gb_loads()
    A("    v_lshlrev_b32 v5, 2, v1")
    A("    v_mov_b32 v6, 0")
    A("    v_mov_b32 v7, 0x358637bd                 ; 1e-6")
    A("    s_mov_b32 s12, 0xffff0000")
    def unpack(b):
        for k in range(4):
            src = b + 4 + k
            if k < 3:
                A(f"    v_lshlrev_b32 v{b+2*k}, 16, v{src}")
                A(f"    v_and_b32 v{b+2*k+1}, s12, v{src}")
            else:
                A(f"    v_lshlrev_b32 v{b+2*k}, 16, v{src}")
                A(f"    v_and_b32 v{b+2*k+1}, s12, v{src}")
    extra = 0 if gbfirst else 2
    for i in range(nld):
        b = XB + 8 * i
        A(f"    s_waitcnt vmcnt({nld-1-i+extra})")
        unpack(b)
        for k in range(4):
            x = f"v[{b+2*k}:{b+2*k+1}]"
            acc = f"v[{ACC+2*k}:{ACC+2*k+1}]"
            if i == 0:
                A(f"    v_pk_mul_f32 {acc}, {x}, {x}")
            else:
                A(f"    v_pk_fma_f32 {acc}, {x}, {x}, {acc}")
    a = [ACC + j for j in range(8)]
    A("    s_nop 1")
    for k in range(4):
        A(f"    v_permlane32_swap_b32 v{a[2*k]}, v{a[2*k+1]}")
    for k in range(4):
        A(f"    v_add_f32 v{a[2*k]}, v{a[2*k]}, v{a[2*k+1]}")
    A("    s_nop 0")
    A(f"    v_permlane16_swap_b32 v{a[0]}, v{a[2]}")
    A(f"    v_permlane16_swap_b32 v{a[4]}, v{a[6]}")
    A(f"    v_add_f32 v{a[0]}, v{a[0]}, v{a[2]}")
    A(f"    v_add_f32 v{a[4]}, v{a[4]}, v{a[6]}")
    if nw == 10:
        A("    s_nop 0")
        A(f"    v_add_f32_dpp v{a[0]}, v{a[0]}, v{a[0]} row_ror:8 row_mask:0xf bank_mask:0xf")
        A(f"    v_add_f32_dpp v{a[4]}, v{a[4]}, v{a[4]} row_ror:8 row_mask:0xf bank_mask:0xf")
    A(f"    v_sqrt_f32 v{a[0]}, v{a[0]}")
    A(f"    v_sqrt_f32 v{a[4]}, v{a[4]}")
    A("    s_nop 0")
    A(f"    v_add_f32 v8, v{a[0]}, v{a[4]}")
    A(f"    v_mov_b32 v{a[2]}, v{a[0]}")
    A(f"    v_mov_b32 v{a[6]}, v{a[4]}")
    rors = [8, 4, 2, 1] if nw == 5 else [4, 2, 1]
    for r in rors:
        A(f"    v_add_f32_dpp v8, v8, v8 row_ror:{r} row_mask:0xf bank_mask:0xf")
        A("    s_nop 1")
    A("    v_add_f32_dpp v8, v8, v8 row_bcast:15 row_mask:0xa bank_mask:0xf")
    A("    s_nop 1")
    A("    v_add_f32_dpp v8, v8, v8 row_bcast:31 row_mask:0xc bank_mask:0xf")
    A("    s_mov_b32 exec_lo, 0")
    A("    s_mov_b32 exec_hi, 0x80000000")
    A("    ds_write_b32 v5, v8")
    A("    s_mov_b64 exec, -1")
    A(f"    v_permlane16_swap_b32 v{a[0]}, v{a[2]}")
    A(f"    v_permlane16_swap_b32 v{a[4]}, v{a[6]}")
    for k in range(4):
        A(f"    v_mov_b32 v{a[2*k+1]}, v{a[2*k]}")
    A("    s_nop 0")
    for k in range(4):
        A(f"    v_permlane32_swap_b32 v{a[2*k]}, v{a[2*k+1]}")
    A("    s_waitcnt vmcnt(0)")
    unpack(G)
    unpack(B)
    for k in range(4):
        A(f"    v_pk_mul_f32 v[{G+2*k}:{G+2*k+1}], v[{G+2*k}:{G+2*k+1}], v[{ACC+2*k}:{ACC+2*k+1}]")
    A("    s_waitcnt lgkmcnt(0)")
    A("    s_barrier")
    if nw == 5:
        A("    ds_read_b128 v[8:11], v6")
        A("    ds_read_b32 v12, v6 offset:16")
        A("    s_waitcnt lgkmcnt(0)")
        A("    v_pk_add_f32 v[8:9], v[8:9], v[10:11]")
        A("    v_add_f32 v8, v8, v12")
        A("    v_add_f32 v8, v8, v9")
    else:
        A("    ds_read_b128 v[8:11], v6")
        A("    ds_read_b128 v[12:15], v6 offset:16")
        A(f"    ds_read_b64 v[{ACC}:{ACC+1}], v6 offset:32")
        A("    s_waitcnt lgkmcnt(0)")
        A("    v_pk_add_f32 v[8:9], v[8:9], v[10:11]")
        A("    v_pk_add_f32 v[12:13], v[12:13], v[14:15]")
        A(f"    v_pk_add_f32 v[8:9], v[8:9], v[{ACC}:{ACC+1}]")
        A("    v_pk_add_f32 v[8:9], v[8:9], v[12:13]")
        A("    v_add_f32 v8, v8, v9")
    A("    v_fmamk_f32 v8, v8, 0x3acccccd, v7       ; mean + 1e-6")
    A("    v_rcp_f32 v8, v8")
    A("    s_nop 0")
    for k in range(4):
        A(f"    v_pk_fma_f32 v[{G+2*k}:{G+2*k+1}], v[{G+2*k}:{G+2*k+1}], v[8:9], 1.0 op_sel_hi:[1,0,0]")
    for i in range(nld):
        b = XB + 8 * i
        for k in range(4):
            x = f"v[{b+2*k}:{b+2*k+1}]"
            A(f"    v_pk_fma_f32 {x}, {x}, v[{G+2*k}:{G+2*k+1}], v[{B+2*k}:{B+2*k+1}]")
        for k in range(4):
            A(f"    v_cvt_pk_bf16_f32 v{b+k}, v{b+2*k}, v{b+2*k+1}")
        ad, o = addr(i)
        A(f"    global_store_dwordx4 {ad}, v[{b}:{b+3}], s[10:11] offset:{o} {stf}".rstrip())
    A("L_end:")
    A("    s_endpgm")
    A('.section .rodata,"a"')
    A(".p2align 6")
    A(".amdhsa_kernel standalone__grn__sampling_kernel")
    A(f"  .amdhsa_next_free_vgpr {NV}")
    A("  .amdhsa_next_free_sgpr 16")
    A(f"  .amdhsa_accum_offset {(NV+3)//4*4}")
    A("  .amdhsa_group_segment_fixed_size 0")
    A("  .amdhsa_kernarg_size 48")
    A("  .amdhsa_user_sgpr_count 2")
    A("  .amdhsa_user_sgpr_kernarg_segment_ptr 1")
    A("  .amdhsa_system_sgpr_workgroup_id_x 1")
    if denorm:
        A("  .amdhsa_float_denorm_mode_32 3")
    A(".end_amdhsa_kernel")
    return "\n".join(L) + "\n"

if __name__ == "__main__":
    out = sys.argv[1]
    kw = {}
    for a in sys.argv[2:]:
        k, v = a.split("=", 1)
        v = v.replace("+", " ")
        kw[k] = int(v) if v.lstrip("-").isdigit() else v
    open(out, "w").write(gen(**kw))
```

```python
import sys

HEADER = """; Kernarg layout for this problem (48 bytes, ptrs only, base s[0:1]):
"""

def gen(nw=5, ldf="", stf="", lds=64, remap=0, gbfirst=0, denorm=1, diag=0, K=20):
    L = []
    A = L.append
    nld = 40 // nw
    lanes_per_row = 80 // nw
    lg = 4 if nw == 5 else 3
    A(HEADER.rstrip())
    A(f"; @launch grid=(512,1,1) block=({nw*64},1,1) lds={lds}")
    A('.amdgcn_target "amdgcn-amd-amdhsa--gfx950"')
    A(".text")
    A(".globl standalone__grn__sampling_kernel")
    A(".p2align 8")
    A(".type standalone__grn__sampling_kernel,@function")
    A("standalone__grn__sampling_kernel:")
    A("    s_load_dwordx8 s[4:11], s[0:1], 0        ; x, g, b, out")
    A("    s_cmp_ge_u32 s2, 512")
    A("    s_cbranch_scc1 L_end")
    if diag:
        A("    s_memrealtime s[18:19]")
        A("    s_load_dwordx2 s[16:17], s[0:1], 32")
    if remap:
        A("    s_and_b32 s3, s2, 7")
        A("    s_lshl_b32 s3, s3, 6")
        A("    s_lshr_b32 s2, s2, 3")
        A("    s_add_u32 s2, s2, s3")
    A("    s_mul_i32 s3, s2, 40960")
    A("    v_lshrrev_b32 v1, 6, v0")
    A(f"    v_and_b32 v2, {lanes_per_row-1}, v0")
    A("    v_lshlrev_b32 v2, 4, v2")
    A(f"    v_lshl_add_u32 v2, v1, {lg+4}, v2")
    A(f"    v_bfe_u32 v3, v0, {lg}, {6-lg}")
    A(f"    v_mul_u32_u24 v3, {nld*1280}, v3")
    A("    v_add3_u32 v3, v3, v2, s3")
    if nld > 4:
        A("    v_add_u32 v4, 5120, v3")
    XB = 16
    ACC = XB + 8 * nld
    G = ACC + 8
    B = G + 8
    NV = B + 8
    def addr(i):
        return ("v3" if i < 4 else "v4"), 1280 * (i % 4)
    A("    s_waitcnt lgkmcnt(0)")
    if diag:
        A("    s_memrealtime s[26:27]")
    def gb_loads():
        A(f"    global_load_dwordx4 v[{G+4}:{G+7}], v2, s[6:7]")
        A(f"    global_load_dwordx4 v[{B+4}:{B+7}], v2, s[8:9]")
    if gbfirst:
        gb_loads()
    for i in range(nld):
        a, o = addr(i)
        b = XB + 8 * i
        A(f"    global_load_dwordx4 v[{b+4}:{b+7}], {a}, s[4:5] offset:{o} {ldf}".rstrip())
    if not gbfirst:
        gb_loads()
    A("    v_lshlrev_b32 v5, 2, v1")
    A("    v_mov_b32 v6, 0")
    A("    v_mov_b32 v7, 0x358637bd                 ; 1e-6")
    A("    s_mov_b32 s12, 0xffff0000")
    def unpack(b):
        for k in range(4):
            src = b + 4 + k
            if k < 3:
                A(f"    v_lshlrev_b32 v{b+2*k}, 16, v{src}")
                A(f"    v_and_b32 v{b+2*k+1}, s12, v{src}")
            else:
                A(f"    v_lshlrev_b32 v{b+2*k}, 16, v{src}")
                A(f"    v_and_b32 v{b+2*k+1}, s12, v{src}")
    extra = 0 if gbfirst else 2
    for i in range(nld):
        b = XB + 8 * i
        A(f"    s_waitcnt vmcnt({nld-1-i+extra})")
        if diag and i == 0:
            A("    s_memrealtime s[20:21]")
        if diag and i == nld - 1:
            A("    s_memrealtime s[22:23]")
        unpack(b)
        for k in range(4):
            x = f"v[{b+2*k}:{b+2*k+1}]"
            acc = f"v[{ACC+2*k}:{ACC+2*k+1}]"
            if i == 0:
                A(f"    v_pk_mul_f32 {acc}, {x}, {x}")
            else:
                A(f"    v_pk_fma_f32 {acc}, {x}, {x}, {acc}")
    a = [ACC + j for j in range(8)]
    A("    s_nop 1")
    for k in range(4):
        A(f"    v_permlane32_swap_b32 v{a[2*k]}, v{a[2*k+1]}")
    for k in range(4):
        A(f"    v_add_f32 v{a[2*k]}, v{a[2*k]}, v{a[2*k+1]}")
    A("    s_nop 0")
    A(f"    v_permlane16_swap_b32 v{a[0]}, v{a[2]}")
    A(f"    v_permlane16_swap_b32 v{a[4]}, v{a[6]}")
    A(f"    v_add_f32 v{a[0]}, v{a[0]}, v{a[2]}")
    A(f"    v_add_f32 v{a[4]}, v{a[4]}, v{a[6]}")
    if nw == 10:
        A("    s_nop 0")
        A(f"    v_add_f32_dpp v{a[0]}, v{a[0]}, v{a[0]} row_ror:8 row_mask:0xf bank_mask:0xf")
        A(f"    v_add_f32_dpp v{a[4]}, v{a[4]}, v{a[4]} row_ror:8 row_mask:0xf bank_mask:0xf")
    A(f"    v_sqrt_f32 v{a[0]}, v{a[0]}")
    A(f"    v_sqrt_f32 v{a[4]}, v{a[4]}")
    A("    s_nop 0")
    A(f"    v_add_f32 v8, v{a[0]}, v{a[4]}")
    A(f"    v_mov_b32 v{a[2]}, v{a[0]}")
    A(f"    v_mov_b32 v{a[6]}, v{a[4]}")
    rors = [8, 4, 2, 1] if nw == 5 else [4, 2, 1]
    for r in rors:
        A(f"    v_add_f32_dpp v8, v8, v8 row_ror:{r} row_mask:0xf bank_mask:0xf")
        A("    s_nop 1")
    A("    v_add_f32_dpp v8, v8, v8 row_bcast:15 row_mask:0xa bank_mask:0xf")
    A("    s_nop 1")
    A("    v_add_f32_dpp v8, v8, v8 row_bcast:31 row_mask:0xc bank_mask:0xf")
    A("    s_mov_b32 exec_lo, 0")
    A("    s_mov_b32 exec_hi, 0x80000000")
    A("    ds_write_b32 v5, v8")
    A("    s_mov_b64 exec, -1")
    A(f"    v_permlane16_swap_b32 v{a[0]}, v{a[2]}")
    A(f"    v_permlane16_swap_b32 v{a[4]}, v{a[6]}")
    for k in range(4):
        A(f"    v_mov_b32 v{a[2*k+1]}, v{a[2*k]}")
    A("    s_nop 0")
    for k in range(4):
        A(f"    v_permlane32_swap_b32 v{a[2*k]}, v{a[2*k+1]}")
    A("    s_waitcnt vmcnt(0)")
    unpack(G)
    unpack(B)
    for k in range(4):
        A(f"    v_pk_mul_f32 v[{G+2*k}:{G+2*k+1}], v[{G+2*k}:{G+2*k+1}], v[{ACC+2*k}:{ACC+2*k+1}]")
    A("    s_waitcnt lgkmcnt(0)")
    A("    s_barrier")
    if nw == 5:
        A("    ds_read_b128 v[8:11], v6")
        A("    ds_read_b32 v12, v6 offset:16")
        A("    s_waitcnt lgkmcnt(0)")
        A("    v_pk_add_f32 v[8:9], v[8:9], v[10:11]")
        A("    v_add_f32 v8, v8, v12")
        A("    v_add_f32 v8, v8, v9")
    else:
        A("    ds_read_b128 v[8:11], v6")
        A("    ds_read_b128 v[12:15], v6 offset:16")
        A(f"    ds_read_b64 v[{ACC}:{ACC+1}], v6 offset:32")
        A("    s_waitcnt lgkmcnt(0)")
        A("    v_pk_add_f32 v[8:9], v[8:9], v[10:11]")
        A("    v_pk_add_f32 v[12:13], v[12:13], v[14:15]")
        A(f"    v_pk_add_f32 v[8:9], v[8:9], v[{ACC}:{ACC+1}]")
        A("    v_pk_add_f32 v[8:9], v[8:9], v[12:13]")
        A("    v_add_f32 v8, v8, v9")
    A("    v_fmamk_f32 v8, v8, 0x3acccccd, v7       ; mean + 1e-6")
    A("    v_rcp_f32 v8, v8")
    A("    s_nop 0")
    for k in range(4):
        A(f"    v_pk_fma_f32 v[{G+2*k}:{G+2*k+1}], v[{G+2*k}:{G+2*k+1}], v[8:9], 1.0 op_sel_hi:[1,0,0]")
    for i in range(nld):
        b = XB + 8 * i
        for k in range(4):
            x = f"v[{b+2*k}:{b+2*k+1}]"
            A(f"    v_pk_fma_f32 {x}, {x}, v[{G+2*k}:{G+2*k+1}], v[{B+2*k}:{B+2*k+1}]")
        for k in range(4):
            A(f"    v_cvt_pk_bf16_f32 v{b+k}, v{b+2*k}, v{b+2*k+1}")
        ad, o = addr(i)
        A(f"    global_store_dwordx4 {ad}, v[{b}:{b+3}], s[10:11] offset:{o} {stf}".rstrip())
    if diag:
        A("    s_memrealtime s[28:29]")
        A("    s_waitcnt vmcnt(0)")
        A("    s_barrier")
        A("    s_memrealtime s[24:25]")
        A("    v_readfirstlane_b32 s30, v1")
        A("    s_waitcnt lgkmcnt(0)")
        A("    s_cmp_lg_u32 s30, 0")
        A("    s_cbranch_scc1 L_end")
        neg = 0
        if diag == 1:
            A("    s_mov_b32 s32, s18"); A("    s_mov_b32 s33, s24")
        elif diag == 2:
            A("    s_mov_b32 s32, s18"); A("    s_mov_b32 s33, s18")
        elif diag == 3:
            A("    s_mov_b32 s32, 0"); A("    s_sub_u32 s33, s20, s18")
        elif diag == 4:
            A("    s_mov_b32 s32, s18"); A("    s_mov_b32 s33, s22")
        elif diag == 5:
            A("    s_sub_u32 s32, s20, s18"); A("    s_mov_b32 s33, 0"); neg = 1
        elif diag == 6:
            A("    s_mov_b32 s32, 0"); A("    s_mov_b32 s33, 0")
        elif diag == 7:
            A("    s_mov_b32 s32, 0"); A("    s_sub_u32 s33, s26, s18")
        elif diag == 8:
            A("    s_mov_b32 s32, 0"); A("    s_sub_u32 s33, s28, s22")
        elif diag == 9:
            A("    s_mov_b32 s32, s18"); A("    s_mov_b32 s33, s28")
        A("    s_not_b32 s32, s32")
        A("    s_mov_b64 exec, 1")
        A("    v_mov_b32 v10, s32")
        A("    v_mov_b32 v11, s33")
        A("    v_mov_b32 v12, 1")
        A("    global_atomic_umax v6, v10, s[16:17] sc1")
        A("    global_atomic_umax v6, v11, s[16:17] offset:4 sc1")
        A("    s_waitcnt vmcnt(0)")
        A("    global_atomic_add v13, v6, v12, s[16:17] offset:8 sc0 sc1")
        A("    s_waitcnt vmcnt(0)")
        A("    v_readfirstlane_b32 s30, v13")
        A("    s_nop 3")
        A("    s_cmp_lg_u32 s30, 511")
        A("    s_cbranch_scc1 L_end")
        A("    global_atomic_umax v10, v6, v6, s[16:17] sc0 sc1")
        A("    global_atomic_umax v11, v6, v6, s[16:17] offset:4 sc0 sc1")
        A("    s_waitcnt vmcnt(0)")
        A("    v_readfirstlane_b32 s32, v10")
        A("    v_readfirstlane_b32 s33, v11")
        A("    s_nop 3")
        A("    s_not_b32 s32, s32")
        if neg:
            A("    s_sub_u32 s34, s32, s33")
        else:
            A("    s_sub_u32 s34, s33, s32")
        A("    v_mov_b32 v10, s34")
        A("    global_store_dword v6, v10, s[16:17] offset:12")
        A("    s_min_u32 s34, s34, 5000")
        A(f"    s_mul_i32 s34, s34, {K}")
        A("    s_memrealtime s[36:37]")
        A("    s_waitcnt lgkmcnt(0)")
        A("L_spin:")
        A("    s_memrealtime s[38:39]")
        A("    s_waitcnt lgkmcnt(0)")
        A("    s_sub_u32 s35, s38, s36")
        A("    s_cmp_lt_u32 s35, s34")
        A("    s_cbranch_scc1 L_spin")
    A("L_end:")
    A("    s_endpgm")
    A('.section .rodata,"a"')
    A(".p2align 6")
    A(".amdhsa_kernel standalone__grn__sampling_kernel")
    A(f"  .amdhsa_next_free_vgpr {NV}")
    A(f"  .amdhsa_next_free_sgpr {48 if diag else 16}")
    A(f"  .amdhsa_accum_offset {(NV+3)//4*4}")
    A("  .amdhsa_group_segment_fixed_size 0")
    A("  .amdhsa_kernarg_size 48")
    A("  .amdhsa_user_sgpr_count 2")
    A("  .amdhsa_user_sgpr_kernarg_segment_ptr 1")
    A("  .amdhsa_system_sgpr_workgroup_id_x 1")
    if denorm:
        A("  .amdhsa_float_denorm_mode_32 3")
    A(".end_amdhsa_kernel")
    return "\n".join(L) + "\n"

if __name__ == "__main__":
    out = sys.argv[1]
    kw = {}
    for a in sys.argv[2:]:
        k, v = a.split("=", 1)
        v = v.replace("+", " ")
        kw[k] = int(v) if v.lstrip("-").isdigit() else v
    open(out, "w").write(gen(**kw))
```

```python
import sys

HEADER = """; Kernarg layout for this problem (48 bytes, ptrs only, base s[0:1]):
"""

def gen(nw=5, ldf="", stf="", lds=64, remap=0, gbfirst=0, denorm=1, diag=0, K=20, qa="0", qb="0", amax=0, bmin=0):
    L = []
    A = L.append
    nld = 40 // nw
    lanes_per_row = 80 // nw
    lg = 4 if nw == 5 else 3
    A(HEADER.rstrip())
    if diag:
        A(f"; @launch kernel=standalone__grn__sampling_kernel grid=(512,1,1) block=({nw*64},1,1) lds={lds}")
        A(f"; @launch kernel=diag_kernel grid=(1,1,1) block=(64,1,1) lds=0")
    else:
        A(f"; @launch grid=(512,1,1) block=({nw*64},1,1) lds={lds}")
    A('.amdgcn_target "amdgcn-amd-amdhsa--gfx950"')
    A(".text")
    A(".globl standalone__grn__sampling_kernel")
    A(".p2align 8")
    A(".type standalone__grn__sampling_kernel,@function")
    A("standalone__grn__sampling_kernel:")
    A("    s_load_dwordx8 s[4:11], s[0:1], 0        ; x, g, b, out")
    A("    s_cmp_ge_u32 s2, 512")
    A("    s_cbranch_scc1 L_end")
    if diag:
        A("    s_memrealtime s[18:19]")
        A("    s_load_dwordx2 s[16:17], s[0:1], 40")
    if remap:
        A("    s_and_b32 s3, s2, 7")
        A("    s_lshl_b32 s3, s3, 6")
        A("    s_lshr_b32 s2, s2, 3")
        A("    s_add_u32 s2, s2, s3")
    A("    s_mul_i32 s3, s2, 40960")
    A("    v_lshrrev_b32 v1, 6, v0")
    A(f"    v_and_b32 v2, {lanes_per_row-1}, v0")
    A("    v_lshlrev_b32 v2, 4, v2")
    A(f"    v_lshl_add_u32 v2, v1, {lg+4}, v2")
    A(f"    v_bfe_u32 v3, v0, {lg}, {6-lg}")
    A(f"    v_mul_u32_u24 v3, {nld*1280}, v3")
    A("    v_add3_u32 v3, v3, v2, s3")
    if nld > 4:
        A("    v_add_u32 v4, 5120, v3")
    XB = 16
    ACC = XB + 8 * nld
    G = ACC + 8
    B = G + 8
    NV = B + 8
    def addr(i):
        return ("v3" if i < 4 else "v4"), 1280 * (i % 4)
    A("    s_waitcnt lgkmcnt(0)")
    if diag:
        A("    s_memrealtime s[26:27]")
    def gb_loads():
        A(f"    global_load_dwordx4 v[{G+4}:{G+7}], v2, s[6:7]")
        A(f"    global_load_dwordx4 v[{B+4}:{B+7}], v2, s[8:9]")
    if gbfirst:
        gb_loads()
    for i in range(nld):
        a, o = addr(i)
        b = XB + 8 * i
        A(f"    global_load_dwordx4 v[{b+4}:{b+7}], {a}, s[4:5] offset:{o} {ldf}".rstrip())
    if not gbfirst:
        gb_loads()
    A("    v_lshlrev_b32 v5, 2, v1")
    A("    v_mov_b32 v6, 0")
    A("    v_mov_b32 v7, 0x358637bd                 ; 1e-6")
    A("    s_mov_b32 s12, 0xffff0000")
    def unpack(b):
        for k in range(4):
            src = b + 4 + k
            if k < 3:
                A(f"    v_lshlrev_b32 v{b+2*k}, 16, v{src}")
                A(f"    v_and_b32 v{b+2*k+1}, s12, v{src}")
            else:
                A(f"    v_lshlrev_b32 v{b+2*k}, 16, v{src}")
                A(f"    v_and_b32 v{b+2*k+1}, s12, v{src}")
    extra = 0 if gbfirst else 2
    for i in range(nld):
        b = XB + 8 * i
        A(f"    s_waitcnt vmcnt({nld-1-i+extra})")
        if diag and i == 0:
            A("    s_memrealtime s[20:21]")
        if diag and i == nld - 1:
            A("    s_memrealtime s[22:23]")
        unpack(b)
        for k in range(4):
            x = f"v[{b+2*k}:{b+2*k+1}]"
            acc = f"v[{ACC+2*k}:{ACC+2*k+1}]"
            if i == 0:
                A(f"    v_pk_mul_f32 {acc}, {x}, {x}")
            else:
                A(f"    v_pk_fma_f32 {acc}, {x}, {x}, {acc}")
    a = [ACC + j for j in range(8)]
    A("    s_nop 1")
    for k in range(4):
        A(f"    v_permlane32_swap_b32 v{a[2*k]}, v{a[2*k+1]}")
    for k in range(4):
        A(f"    v_add_f32 v{a[2*k]}, v{a[2*k]}, v{a[2*k+1]}")
    A("    s_nop 0")
    A(f"    v_permlane16_swap_b32 v{a[0]}, v{a[2]}")
    A(f"    v_permlane16_swap_b32 v{a[4]}, v{a[6]}")
    A(f"    v_add_f32 v{a[0]}, v{a[0]}, v{a[2]}")
    A(f"    v_add_f32 v{a[4]}, v{a[4]}, v{a[6]}")
    if nw == 10:
        A("    s_nop 0")
        A(f"    v_add_f32_dpp v{a[0]}, v{a[0]}, v{a[0]} row_ror:8 row_mask:0xf bank_mask:0xf")
        A(f"    v_add_f32_dpp v{a[4]}, v{a[4]}, v{a[4]} row_ror:8 row_mask:0xf bank_mask:0xf")
    A(f"    v_sqrt_f32 v{a[0]}, v{a[0]}")
    A(f"    v_sqrt_f32 v{a[4]}, v{a[4]}")
    A("    s_nop 0")
    A(f"    v_add_f32 v8, v{a[0]}, v{a[4]}")
    A(f"    v_mov_b32 v{a[2]}, v{a[0]}")
    A(f"    v_mov_b32 v{a[6]}, v{a[4]}")
    rors = [8, 4, 2, 1] if nw == 5 else [4, 2, 1]
    for r in rors:
        A(f"    v_add_f32_dpp v8, v8, v8 row_ror:{r} row_mask:0xf bank_mask:0xf")
        A("    s_nop 1")
    A("    v_add_f32_dpp v8, v8, v8 row_bcast:15 row_mask:0xa bank_mask:0xf")
    A("    s_nop 1")
    A("    v_add_f32_dpp v8, v8, v8 row_bcast:31 row_mask:0xc bank_mask:0xf")
    A("    s_mov_b32 exec_lo, 0")
    A("    s_mov_b32 exec_hi, 0x80000000")
    A("    ds_write_b32 v5, v8")
    A("    s_mov_b64 exec, -1")
    A(f"    v_permlane16_swap_b32 v{a[0]}, v{a[2]}")
    A(f"    v_permlane16_swap_b32 v{a[4]}, v{a[6]}")
    for k in range(4):
        A(f"    v_mov_b32 v{a[2*k+1]}, v{a[2*k]}")
    A("    s_nop 0")
    for k in range(4):
        A(f"    v_permlane32_swap_b32 v{a[2*k]}, v{a[2*k+1]}")
    A("    s_waitcnt vmcnt(0)")
    unpack(G)
    unpack(B)
    for k in range(4):
        A(f"    v_pk_mul_f32 v[{G+2*k}:{G+2*k+1}], v[{G+2*k}:{G+2*k+1}], v[{ACC+2*k}:{ACC+2*k+1}]")
    A("    s_waitcnt lgkmcnt(0)")
    A("    s_barrier")
    if diag:
        A("    s_memrealtime s[40:41]")
    if nw == 5:
        A("    ds_read_b128 v[8:11], v6")
        A("    ds_read_b32 v12, v6 offset:16")
        A("    s_waitcnt lgkmcnt(0)")
        A("    v_pk_add_f32 v[8:9], v[8:9], v[10:11]")
        A("    v_add_f32 v8, v8, v12")
        A("    v_add_f32 v8, v8, v9")
    else:
        A("    ds_read_b128 v[8:11], v6")
        A("    ds_read_b128 v[12:15], v6 offset:16")
        A(f"    ds_read_b64 v[{ACC}:{ACC+1}], v6 offset:32")
        A("    s_waitcnt lgkmcnt(0)")
        A("    v_pk_add_f32 v[8:9], v[8:9], v[10:11]")
        A("    v_pk_add_f32 v[12:13], v[12:13], v[14:15]")
        A(f"    v_pk_add_f32 v[8:9], v[8:9], v[{ACC}:{ACC+1}]")
        A("    v_pk_add_f32 v[8:9], v[8:9], v[12:13]")
        A("    v_add_f32 v8, v8, v9")
    A("    v_fmamk_f32 v8, v8, 0x3acccccd, v7       ; mean + 1e-6")
    A("    v_rcp_f32 v8, v8")
    A("    s_nop 0")
    for k in range(4):
        A(f"    v_pk_fma_f32 v[{G+2*k}:{G+2*k+1}], v[{G+2*k}:{G+2*k+1}], v[8:9], 1.0 op_sel_hi:[1,0,0]")
    for i in range(nld):
        b = XB + 8 * i
        for k in range(4):
            x = f"v[{b+2*k}:{b+2*k+1}]"
            A(f"    v_pk_fma_f32 {x}, {x}, v[{G+2*k}:{G+2*k+1}], v[{B+2*k}:{B+2*k+1}]")
        for k in range(4):
            A(f"    v_cvt_pk_bf16_f32 v{b+k}, v{b+2*k}, v{b+2*k+1}")
        ad, o = addr(i)
        A(f"    global_store_dwordx4 {ad}, v[{b}:{b+3}], s[10:11] offset:{o} {stf}".rstrip())
    if diag:
        A("    s_memrealtime s[28:29]")
        A("    s_waitcnt vmcnt(0)")
        A("    s_memrealtime s[24:25]")
        A("    v_readfirstlane_b32 s30, v1")
        A("    s_waitcnt lgkmcnt(0)")
        names = dict(start="s18", karg="s26", first="s20", last="s22", issued="s28", end="s24", bar="s40")
        def q(dst, e):
            if e == "0":
                A(f"    s_mov_b32 {dst}, 0")
            elif "-" in e:
                x, y = e.split("-")
                A(f"    s_sub_u32 {dst}, {names[x]}, {names[y]}")
            elif e == "k2":
                A(f"    s_mov_b32 {dst}, 0")
            else:
                A(f"    s_mov_b32 {dst}, {names[e]}")
        q("s32", qa)
        q("s33", qb)
        A(f"    s_mul_i32 s31, s2, {nw}")
        A("    s_add_u32 s31, s31, s30")
        A("    s_lshl_b32 s31, s31, 3")
        A("    s_mov_b64 exec, 1")
        A("    v_mov_b32 v10, s32")
        A("    v_mov_b32 v11, s33")
        A("    v_mov_b32 v12, s31")
        A("    global_store_dwordx2 v12, v[10:11], s[16:17]")
    A("L_end:")
    A("    s_endpgm")
    if diag:
        nrec = 512 * nw
        aop = "max" if amax else "min"
        bop = "min" if bmin else "max"
        A(".globl diag_kernel")
        A(".p2align 8")
        A(".type diag_kernel,@function")
        A("diag_kernel:")
        A("    s_memrealtime s[18:19]")
        A("    s_load_dwordx4 s[4:7], s[0:1], 32")
        A("    s_cmp_lg_u32 s2, 0")
        A("    s_cbranch_scc1 L_end2")
        A("    v_lshlrev_b32 v1, 3, v0")
        A("    s_waitcnt lgkmcnt(0)")
        A("    global_load_dwordx2 v[2:3], v1, s[6:7]")
        A("    s_waitcnt vmcnt(0)")
        A(f"    s_mov_b32 s8, {nrec//64 - 1}")
        A("L_rec:")
        A("    v_add_u32 v1, 512, v1")
        A("    global_load_dwordx2 v[4:5], v1, s[6:7]")
        A("    s_waitcnt vmcnt(0)")
        A(f"    v_{aop}_u32 v2, v2, v4")
        A(f"    v_{bop}_u32 v3, v3, v5")
        A("    s_sub_u32 s8, s8, 1")
        A("    s_cmp_lg_u32 s8, 0")
        A("    s_cbranch_scc1 L_rec")
        A("    s_nop 1")
        A("    v_readlane_b32 s10, v2, 0")
        A("    v_readlane_b32 s11, v3, 0")
        for l in range(1, 64):
            A(f"    v_readlane_b32 s12, v2, {l}")
            A(f"    v_readlane_b32 s13, v3, {l}")
            A("    s_nop 1")
            A(f"    s_{aop}_u32 s10, s10, s12")
            A(f"    s_{bop}_u32 s11, s11, s13")
        if qb == "k2":
            A("    s_mov_b32 s11, s18")
        A("    s_sub_u32 s34, s11, s10")
        A("    v_mov_b32 v10, s34")
        A("    v_mov_b32 v6, 0")
        A("    global_store_dword v6, v10, s[4:5]")
        A("    s_min_u32 s34, s34, 5000")
        A(f"    s_mul_i32 s34, s34, {K}")
        A("    s_memrealtime s[36:37]")
        A("    s_waitcnt lgkmcnt(0)")
        A("L_spin:")
        A("    s_memrealtime s[38:39]")
        A("    s_waitcnt lgkmcnt(0)")
        A("    s_sub_u32 s35, s38, s36")
        A("    s_cmp_lt_u32 s35, s34")
        A("    s_cbranch_scc1 L_spin")
        A("L_end2:")
        A("    s_endpgm")
    A('.section .rodata,"a"')
    A(".p2align 6")
    A(".amdhsa_kernel standalone__grn__sampling_kernel")
    A(f"  .amdhsa_next_free_vgpr {NV}")
    A(f"  .amdhsa_next_free_sgpr {48 if diag else 16}")
    A(f"  .amdhsa_accum_offset {(NV+3)//4*4}")
    A("  .amdhsa_group_segment_fixed_size 0")
    A("  .amdhsa_kernarg_size 48")
    A("  .amdhsa_user_sgpr_count 2")
    A("  .amdhsa_user_sgpr_kernarg_segment_ptr 1")
    A("  .amdhsa_system_sgpr_workgroup_id_x 1")
    if denorm:
        A("  .amdhsa_float_denorm_mode_32 3")
    A(".end_amdhsa_kernel")
    if diag:
        A(".p2align 6")
        A(".amdhsa_kernel diag_kernel")
        A("  .amdhsa_next_free_vgpr 16")
        A("  .amdhsa_next_free_sgpr 48")
        A("  .amdhsa_accum_offset 16")
        A("  .amdhsa_group_segment_fixed_size 0")
        A("  .amdhsa_kernarg_size 48")
        A("  .amdhsa_user_sgpr_count 2")
        A("  .amdhsa_user_sgpr_kernarg_segment_ptr 1")
        A("  .amdhsa_system_sgpr_workgroup_id_x 1")
        A(".end_amdhsa_kernel")
    return "\n".join(L) + "\n"

if __name__ == "__main__":
    out = sys.argv[1]
    kw = {}
    for a in sys.argv[2:]:
        k, v = a.split("=", 1)
        v = v.replace("+", " ")
        kw[k] = int(v) if (v.isdigit() and k not in ("qa","qb")) else v
    open(out, "w").write(gen(**kw))
```

```python
import sys

HEADER = """; Kernarg layout for this problem (48 bytes, ptrs only, base s[0:1]):
"""

def gen(nw=5, ldf="", stf="", lds=64, remap=0, gbfirst=0, denorm=1, diag=0, K=20, qa="0", qb="0", amax=0, bmin=0, probe=0):
    L = []
    A = L.append
    nld = 40 // nw
    lanes_per_row = 80 // nw
    lg = 4 if nw == 5 else 3
    A(HEADER.rstrip())
    if diag == 1:
        A(f"; @launch kernel=standalone__grn__sampling_kernel grid=(512,1,1) block=({nw*64},1,1) lds={lds}")
        A(f"; @launch kernel=diag_kernel grid=(1,1,1) block=(64,1,1) lds=0")
    elif probe:
        A(f"; @launch kernel=probe_kernel grid=(1,1,1) block=(64,1,1) lds=0")
        A(f"; @launch kernel=standalone__grn__sampling_kernel grid=(512,1,1) block=({nw*64},1,1) lds={lds}")
    else:
        A(f"; @launch grid=(512,1,1) block=({nw*64},1,1) lds={lds}")
    A('.amdgcn_target "amdgcn-amd-amdhsa--gfx950"')
    A(".text")
    A(".globl standalone__grn__sampling_kernel")
    A(".p2align 8")
    A(".type standalone__grn__sampling_kernel,@function")
    A("standalone__grn__sampling_kernel:")
    A("    s_load_dwordx8 s[4:11], s[0:1], 0        ; x, g, b, out")
    A("    s_cmp_ge_u32 s2, 512")
    A("    s_cbranch_scc1 L_end")
    if diag:
        A("    s_memrealtime s[18:19]")
        A("    s_load_dwordx2 s[16:17], s[0:1], 40")
    if remap:
        A("    s_and_b32 s3, s2, 7")
        A("    s_lshl_b32 s3, s3, 6")
        A("    s_lshr_b32 s2, s2, 3")
        A("    s_add_u32 s2, s2, s3")
    A("    s_mul_i32 s3, s2, 40960")
    A("    v_lshrrev_b32 v1, 6, v0")
    A(f"    v_and_b32 v2, {lanes_per_row-1}, v0")
    A("    v_lshlrev_b32 v2, 4, v2")
    A(f"    v_lshl_add_u32 v2, v1, {lg+4}, v2")
    A(f"    v_bfe_u32 v3, v0, {lg}, {6-lg}")
    A(f"    v_mul_u32_u24 v3, {nld*1280}, v3")
    A("    v_add3_u32 v3, v3, v2, s3")
    if nld > 4:
        A("    v_add_u32 v4, 5120, v3")
    XB = 16
    ACC = XB + 8 * nld
    G = ACC + 8
    B = G + 8
    NV = B + 8
    def addr(i):
        return ("v3" if i < 4 else "v4"), 1280 * (i % 4)
    A("    s_waitcnt lgkmcnt(0)")
    if diag:
        A("    s_memrealtime s[26:27]")
    def gb_loads():
        A(f"    global_load_dwordx4 v[{G+4}:{G+7}], v2, s[6:7]")
        A(f"    global_load_dwordx4 v[{B+4}:{B+7}], v2, s[8:9]")
    if gbfirst:
        gb_loads()
    for i in range(nld):
        a, o = addr(i)
        b = XB + 8 * i
        A(f"    global_load_dwordx4 v[{b+4}:{b+7}], {a}, s[4:5] offset:{o} {ldf}".rstrip())
    if not gbfirst:
        gb_loads()
    A("    v_lshlrev_b32 v5, 2, v1")
    A("    v_mov_b32 v6, 0")
    A("    v_mov_b32 v7, 0x358637bd                 ; 1e-6")
    A("    s_mov_b32 s12, 0xffff0000")
    def unpack(b):
        for k in range(4):
            src = b + 4 + k
            if k < 3:
                A(f"    v_lshlrev_b32 v{b+2*k}, 16, v{src}")
                A(f"    v_and_b32 v{b+2*k+1}, s12, v{src}")
            else:
                A(f"    v_lshlrev_b32 v{b+2*k}, 16, v{src}")
                A(f"    v_and_b32 v{b+2*k+1}, s12, v{src}")
    extra = 0 if gbfirst else 2
    for i in range(nld):
        b = XB + 8 * i
        A(f"    s_waitcnt vmcnt({nld-1-i+extra})")
        if diag and i == 0:
            A("    s_memrealtime s[20:21]")
        if diag and i == nld - 1:
            A("    s_memrealtime s[22:23]")
        unpack(b)
        for k in range(4):
            x = f"v[{b+2*k}:{b+2*k+1}]"
            acc = f"v[{ACC+2*k}:{ACC+2*k+1}]"
            if i == 0:
                A(f"    v_pk_mul_f32 {acc}, {x}, {x}")
            else:
                A(f"    v_pk_fma_f32 {acc}, {x}, {x}, {acc}")
    a = [ACC + j for j in range(8)]
    A("    s_nop 1")
    for k in range(4):
        A(f"    v_permlane32_swap_b32 v{a[2*k]}, v{a[2*k+1]}")
    for k in range(4):
        A(f"    v_add_f32 v{a[2*k]}, v{a[2*k]}, v{a[2*k+1]}")
    A("    s_nop 0")
    A(f"    v_permlane16_swap_b32 v{a[0]}, v{a[2]}")
    A(f"    v_permlane16_swap_b32 v{a[4]}, v{a[6]}")
    A(f"    v_add_f32 v{a[0]}, v{a[0]}, v{a[2]}")
    A(f"    v_add_f32 v{a[4]}, v{a[4]}, v{a[6]}")
    if nw == 10:
        A("    s_nop 0")
        A(f"    v_add_f32_dpp v{a[0]}, v{a[0]}, v{a[0]} row_ror:8 row_mask:0xf bank_mask:0xf")
        A(f"    v_add_f32_dpp v{a[4]}, v{a[4]}, v{a[4]} row_ror:8 row_mask:0xf bank_mask:0xf")
    A(f"    v_sqrt_f32 v{a[0]}, v{a[0]}")
    A(f"    v_sqrt_f32 v{a[4]}, v{a[4]}")
    A("    s_nop 0")
    A(f"    v_add_f32 v8, v{a[0]}, v{a[4]}")
    A(f"    v_mov_b32 v{a[2]}, v{a[0]}")
    A(f"    v_mov_b32 v{a[6]}, v{a[4]}")
    rors = [8, 4, 2, 1] if nw == 5 else [4, 2, 1]
    for r in rors:
        A(f"    v_add_f32_dpp v8, v8, v8 row_ror:{r} row_mask:0xf bank_mask:0xf")
        A("    s_nop 1")
    A("    v_add_f32_dpp v8, v8, v8 row_bcast:15 row_mask:0xa bank_mask:0xf")
    A("    s_nop 1")
    A("    v_add_f32_dpp v8, v8, v8 row_bcast:31 row_mask:0xc bank_mask:0xf")
    A("    s_mov_b32 exec_lo, 0")
    A("    s_mov_b32 exec_hi, 0x80000000")
    A("    ds_write_b32 v5, v8")
    A("    s_mov_b64 exec, -1")
    A(f"    v_permlane16_swap_b32 v{a[0]}, v{a[2]}")
    A(f"    v_permlane16_swap_b32 v{a[4]}, v{a[6]}")
    for k in range(4):
        A(f"    v_mov_b32 v{a[2*k+1]}, v{a[2*k]}")
    A("    s_nop 0")
    for k in range(4):
        A(f"    v_permlane32_swap_b32 v{a[2*k]}, v{a[2*k+1]}")
    A("    s_waitcnt vmcnt(0)")
    unpack(G)
    unpack(B)
    for k in range(4):
        A(f"    v_pk_mul_f32 v[{G+2*k}:{G+2*k+1}], v[{G+2*k}:{G+2*k+1}], v[{ACC+2*k}:{ACC+2*k+1}]")
    A("    s_waitcnt lgkmcnt(0)")
    A("    s_barrier")
    if diag:
        A("    s_memrealtime s[40:41]")
    if nw == 5:
        A("    ds_read_b128 v[8:11], v6")
        A("    ds_read_b32 v12, v6 offset:16")
        A("    s_waitcnt lgkmcnt(0)")
        A("    v_pk_add_f32 v[8:9], v[8:9], v[10:11]")
        A("    v_add_f32 v8, v8, v12")
        A("    v_add_f32 v8, v8, v9")
    else:
        A("    ds_read_b128 v[8:11], v6")
        A("    ds_read_b128 v[12:15], v6 offset:16")
        A(f"    ds_read_b64 v[{ACC}:{ACC+1}], v6 offset:32")
        A("    s_waitcnt lgkmcnt(0)")
        A("    v_pk_add_f32 v[8:9], v[8:9], v[10:11]")
        A("    v_pk_add_f32 v[12:13], v[12:13], v[14:15]")
        A(f"    v_pk_add_f32 v[8:9], v[8:9], v[{ACC}:{ACC+1}]")
        A("    v_pk_add_f32 v[8:9], v[8:9], v[12:13]")
        A("    v_add_f32 v8, v8, v9")
    A("    v_fmamk_f32 v8, v8, 0x3acccccd, v7       ; mean + 1e-6")
    A("    v_rcp_f32 v8, v8")
    A("    s_nop 0")
    for k in range(4):
        A(f"    v_pk_fma_f32 v[{G+2*k}:{G+2*k+1}], v[{G+2*k}:{G+2*k+1}], v[8:9], 1.0 op_sel_hi:[1,0,0]")
    for i in range(nld):
        b = XB + 8 * i
        for k in range(4):
            x = f"v[{b+2*k}:{b+2*k+1}]"
            A(f"    v_pk_fma_f32 {x}, {x}, v[{G+2*k}:{G+2*k+1}], v[{B+2*k}:{B+2*k+1}]")
        for k in range(4):
            A(f"    v_cvt_pk_bf16_f32 v{b+k}, v{b+2*k}, v{b+2*k+1}")
        ad, o = addr(i)
        A(f"    global_store_dwordx4 {ad}, v[{b}:{b+3}], s[10:11] offset:{o} {stf}".rstrip())
    if diag:
        A("    s_memrealtime s[28:29]")
        A("    s_waitcnt vmcnt(0)")
        A("    s_memrealtime s[24:25]")
        A("    v_readfirstlane_b32 s30, v1")
        A("    s_waitcnt lgkmcnt(0)")
        names = dict(start="s18", karg="s26", first="s20", last="s22", issued="s28", end="s24", bar="s40")
        def q(dst, e):
            if e == "0":
                A(f"    s_mov_b32 {dst}, 0")
            elif "-" in e:
                x, y = e.split("-")
                A(f"    s_sub_u32 {dst}, {names[x]}, {names[y]}")
            elif e == "k2":
                A(f"    s_mov_b32 {dst}, 0")
            else:
                A(f"    s_mov_b32 {dst}, {names[e]}")
        if diag == 2:
            A(f"    s_mul_i32 s31, s2, {nw}")
            A("    s_add_u32 s31, s31, s30")
            A("    s_lshl_b32 s31, s31, 5")
            A("    s_getreg_b32 s32, hwreg(HW_REG_HW_ID)")
            A("    s_getreg_b32 s33, hwreg(HW_REG_XCC_ID)")
            A("    s_lshl_b32 s33, s33, 28")
            A("    s_and_b32 s32, s32, 0xfffffff")
            A("    s_or_b32 s32, s32, s33")
            A("    s_mov_b64 exec, 1")
            for j, r in enumerate(["s18", "s26", "s20", "s22", "s40", "s28", "s24", "s32"]):
                A(f"    v_mov_b32 v{16+j}, {r}")
            A("    v_mov_b32 v12, s31")
            A("    global_store_dwordx4 v12, v[16:19], s[16:17]")
            A("    global_store_dwordx4 v12, v[20:23], s[16:17] offset:16")
            A("    s_endpgm")
        q("s32", qa)
        q("s33", qb)
        A(f"    s_mul_i32 s31, s2, {nw}")
        A("    s_add_u32 s31, s31, s30")
        A("    s_lshl_b32 s31, s31, 3")
        A("    s_mov_b64 exec, 1")
        A("    v_mov_b32 v10, s32")
        A("    v_mov_b32 v11, s33")
        A("    v_mov_b32 v12, s31")
        A("    global_store_dwordx2 v12, v[10:11], s[16:17]")
    if probe:
        A("    s_load_dwordx4 s[16:19], s[0:1], 32")
        A("    s_cmp_ge_u32 s2, 4")
        A("    s_cbranch_scc1 L_end")
        A("    s_waitcnt lgkmcnt(0)")
        A("    v_cmp_gt_u32 vcc, 12, v0")
        A("    s_and_saveexec_b64 s[20:21], vcc")
        A("    s_cbranch_execz L_end")
        A("    v_lshlrev_b32 v10, 2, v0")
        A("    global_load_dword v11, v10, s[18:19] sc0 sc1")
        A("    s_waitcnt vmcnt(0)")
        A("    global_store_dword v10, v11, s[16:17]")
        A("    s_getreg_b32 s22, hwreg(HW_REG_XCC_ID)")
        A("    s_lshl_b32 s23, s2, 2")
        A("    v_mov_b32 v10, s23")
        A("    v_mov_b32 v11, s22")
        A("    global_store_dword v10, v11, s[16:17] offset:48")
    A("L_end:")
    A("    s_endpgm")
    if diag == 1:
        nrec = 512 * nw
        aop = "max" if amax else "min"
        bop = "min" if bmin else "max"
        A(".globl diag_kernel")
        A(".p2align 8")
        A(".type diag_kernel,@function")
        A("diag_kernel:")
        A("    s_memrealtime s[18:19]")
        A("    s_load_dwordx4 s[4:7], s[0:1], 32")
        A("    s_cmp_lg_u32 s2, 0")
        A("    s_cbranch_scc1 L_end2")
        A("    v_lshlrev_b32 v1, 3, v0")
        A("    s_waitcnt lgkmcnt(0)")
        A("    global_load_dwordx2 v[2:3], v1, s[6:7]")
        A("    s_waitcnt vmcnt(0)")
        A(f"    s_mov_b32 s8, {nrec//64 - 1}")
        A("L_rec:")
        A("    v_add_u32 v1, 512, v1")
        A("    global_load_dwordx2 v[4:5], v1, s[6:7]")
        A("    s_waitcnt vmcnt(0)")
        A(f"    v_{aop}_u32 v2, v2, v4")
        A(f"    v_{bop}_u32 v3, v3, v5")
        A("    s_sub_u32 s8, s8, 1")
        A("    s_cmp_lg_u32 s8, 0")
        A("    s_cbranch_scc1 L_rec")
        A("    s_nop 1")
        A("    v_readlane_b32 s10, v2, 0")
        A("    v_readlane_b32 s11, v3, 0")
        for l in range(1, 64):
            A(f"    v_readlane_b32 s12, v2, {l}")
            A(f"    v_readlane_b32 s13, v3, {l}")
            A("    s_nop 1")
            A(f"    s_{aop}_u32 s10, s10, s12")
            A(f"    s_{bop}_u32 s11, s11, s13")
        if qb == "k2":
            A("    s_mov_b32 s11, s18")
        A("    s_sub_u32 s34, s11, s10")
        A("    v_mov_b32 v10, s34")
        A("    v_mov_b32 v6, 0")
        A("    global_store_dword v6, v10, s[4:5]")
        A("    s_min_u32 s34, s34, 5000")
        A(f"    s_mul_i32 s34, s34, {K}")
        A("    s_memrealtime s[36:37]")
        A("    s_waitcnt lgkmcnt(0)")
        A("L_spin:")
        A("    s_memrealtime s[38:39]")
        A("    s_waitcnt lgkmcnt(0)")
        A("    s_sub_u32 s35, s38, s36")
        A("    s_cmp_lt_u32 s35, s34")
        A("    s_cbranch_scc1 L_spin")
        A("L_end2:")
        A("    s_endpgm")
    if probe:
        A(".globl probe_kernel")
        A(".p2align 8")
        A(".type probe_kernel,@function")
        A("probe_kernel:")
        A("    s_load_dwordx8 s[4:11], s[0:1], 0")
        A("    s_load_dwordx2 s[12:13], s[0:1], 40")
        A("    s_cmp_lg_u32 s2, 0")
        A("    s_cbranch_scc1 L_end3")
        A("    s_mov_b64 exec, 1")
        A("    s_waitcnt lgkmcnt(0)")
        for bi, base in enumerate(["s[4:5]", "s[10:11]"]):
            A(f"    s_mov_b32 s{30+bi}, 0")
            for r in range(10):
                for half in range(2):
                    A(f"    s_mov_b32 s{26+half}, 0xffff")
                    for k in range(4):
                        off = r * (2 << 20) + half * 8192 + k * 16384 + 512 * k
                        A(f"    v_mov_b32 v1, {off}")
                        A("    s_memtime s[20:21]")
                        A("    s_waitcnt lgkmcnt(0)")
                        A(f"    global_load_dword v2, v1, {base} sc0 sc1")
                        A("    s_waitcnt vmcnt(0)")
                        A("    s_memtime s[22:23]")
                        A("    s_waitcnt lgkmcnt(0)")
                        A("    s_sub_u32 s24, s22, s20")
                        A(f"    s_min_u32 s{26+half}, s{26+half}, s24")
                A("    s_cmp_gt_u32 s26, s27")
                A(f"    s_cselect_b32 s24, {1<<r}, 0")
                A(f"    s_or_b32 s{30+bi}, s{30+bi}, s24")
                if r == 0:
                    A(f"    s_mov_b32 s{34+2*bi}, s26")
                    A(f"    s_mov_b32 s{35+2*bi}, s27")
        A("    s_getreg_b32 s32, hwreg(HW_REG_XCC_ID)")
        vals = ["s30", "s31", "s32", "s34", "s35", "s36", "s37", "s4", "s5", "s10", "s11", "s12"]
        for j, v in enumerate(vals):
            A(f"    v_mov_b32 v{4+j}, {v}")
        A("    v_mov_b32 v1, 0")
        A("    global_store_dwordx4 v1, v[4:7], s[12:13]")
        A("    global_store_dwordx4 v1, v[8:11], s[12:13] offset:16")
        A("    global_store_dwordx4 v1, v[12:15], s[12:13] offset:32")
        A("L_end3:")
        A("    s_endpgm")
    A('.section .rodata,"a"')
    A(".p2align 6")
    A(".amdhsa_kernel standalone__grn__sampling_kernel")
    A(f"  .amdhsa_next_free_vgpr {NV}")
    A(f"  .amdhsa_next_free_sgpr {48 if (diag or probe) else 16}")
    A(f"  .amdhsa_accum_offset {(NV+3)//4*4}")
    A("  .amdhsa_group_segment_fixed_size 0")
    A("  .amdhsa_kernarg_size 48")
    A("  .amdhsa_user_sgpr_count 2")
    A("  .amdhsa_user_sgpr_kernarg_segment_ptr 1")
    A("  .amdhsa_system_sgpr_workgroup_id_x 1")
    if denorm:
        A("  .amdhsa_float_denorm_mode_32 3")
    A(".end_amdhsa_kernel")
    if diag == 1 or probe:
        A(".p2align 6")
        A(".amdhsa_kernel diag_kernel" if diag else ".amdhsa_kernel probe_kernel")
        A("  .amdhsa_next_free_vgpr 16")
        A("  .amdhsa_next_free_sgpr 48")
        A("  .amdhsa_accum_offset 16")
        A("  .amdhsa_group_segment_fixed_size 0")
        A("  .amdhsa_kernarg_size 48")
        A("  .amdhsa_user_sgpr_count 2")
        A("  .amdhsa_user_sgpr_kernarg_segment_ptr 1")
        A("  .amdhsa_system_sgpr_workgroup_id_x 1")
        A(".end_amdhsa_kernel")
    return "\n".join(L) + "\n"

if __name__ == "__main__":
    out = sys.argv[1]
    kw = {}
    for a in sys.argv[2:]:
        k, v = a.split("=", 1)
        v = v.replace("+", " ")
        kw[k] = int(v) if (v.isdigit() and k not in ("qa","qb")) else v
    open(out, "w").write(gen(**kw))
```

```python
import sys

HEADER = """; Kernarg layout for this problem (48 bytes, ptrs only, base s[0:1]):
"""

def gen(nw=5, U=1, ldf="nt", stf="nt", lds=128, denorm=1, diag=0, K=20, qa="0", qb="0", amax=0, bmin=0,
        ustride=1, late=0, prio=0, al=1, hop=0, hopat=1, tlbw=0):
    L = []
    A = L.append
    grid = 512 // U
    nld = 40 // nw
    lpr = 80 // nw
    lg = 4 if nw == 5 else 3
    nh = (nld + 3) // 4
    A(HEADER.rstrip())
    if diag == 1:
        A(f"; @launch kernel=standalone__grn__sampling_kernel grid=({grid},1,1) block=({nw*64},1,1) lds={lds}")
        A(f"; @launch kernel=diag_kernel grid=(1,1,1) block=(64,1,1) lds=0")
    else:
        A(f"; @launch grid=({grid},1,1) block=({nw*64},1,1) lds={lds}")
    A('.amdgcn_target "amdgcn-amd-amdhsa--gfx950"')
    A(".text")
    A(".globl standalone__grn__sampling_kernel")
    if al:
        A(".p2align 12")
    A(".p2align 8")
    A(".type standalone__grn__sampling_kernel,@function")
    A("standalone__grn__sampling_kernel:")
    A("    s_load_dwordx8 s[4:11], s[0:1], 0        ; x, g, b, out")
    if diag:
        A("    s_memrealtime s[18:19]")
        A("    s_load_dwordx2 s[16:17], s[0:1], 40")
    A(f"    s_cmp_ge_u32 s2, {grid}")
    A("    s_cbranch_scc1 L_end")
    A(f"    s_mul_i32 s3, s2, {40960*U if ustride else 40960}")
    ub = 40960 if ustride else 40960 * grid
    A("    v_lshrrev_b32 v1, 6, v0")
    A(f"    v_and_b32 v2, {lpr-1}, v0")
    A("    v_lshlrev_b32 v2, 4, v2")
    A(f"    v_lshl_add_u32 v2, v1, {lg+4}, v2")
    A(f"    v_bfe_u32 v3, v0, {lg}, {6-lg}")
    A(f"    v_mul_u32_u24 v3, {nld*1280}, v3")
    AD = 16
    A(f"    v_add3_u32 v{AD}, v3, v2, s3")
    for u in range(U):
        for h in range(nh):
            if u or h:
                A(f"    v_add_u32 v{AD+u*nh+h}, {u*ub+h*5120}, v{AD}")
    XB = (AD + U * nh + 3) // 4 * 4
    ACC = XB + 8 * nld * U
    G = ACC + 8
    B = G + 8
    T = B + 8 if U > 1 else G
    NV = max(T, B) + 8
    def addr(u, i):
        return f"v{AD+u*nh+i//4}", 1280 * (i % 4)
    def xb(u, i):
        return XB + 8 * (u * nld + i)
    def dohop():
        A("    s_cmp_eq_u32 0, 0")
        A("    s_branch L_pad0")
        A("L_back:")
        A("    s_cmp_eq_u32 0, 1")
    if hop and not hopat:
        dohop()
    A("    s_waitcnt lgkmcnt(0)")
    if diag:
        A("    s_memrealtime s[26:27]")
    vm = []
    def loads(u):
        for i in range(nld):
            a, o = addr(u, i)
            b = xb(u, i)
            A(f"    global_load_dwordx4 v[{b+4}:{b+7}], {a}, s[4:5] offset:{o} {ldf}".rstrip())
            vm.append(("x", u, i))
    def wait_for(tag):
        idx = vm.index(tag)
        n = len(vm) - 1 - idx
        A(f"    s_waitcnt vmcnt({n})")
    if tlbw == 2:
        A("    v_mov_b32 v13, s3")
        A(f"    global_load_dword v14, v13, s[10:11]"); vm.append(("t",))
    loads(0)
    if tlbw == 1:
        A("    v_mov_b32 v13, s3")
        A(f"    global_load_dword v14, v13, s[10:11]"); vm.append(("t",))
    A(f"    global_load_dwordx4 v[{G+4}:{G+7}], v2, s[6:7]"); vm.append(("g",))
    A(f"    global_load_dwordx4 v[{B+4}:{B+7}], v2, s[8:9]"); vm.append(("b",))
    if not late:
        for u in range(1, U):
            loads(u)
    if hop and hopat:
        dohop()
    A("    v_lshlrev_b32 v5, 2, v1")
    A("    v_mov_b32 v6, 0")
    A("    v_mov_b32 v7, 0x358637bd                 ; 1e-6")
    A("    s_mov_b32 s12, 0xffff0000")
    def unpack(b):
        for k in range(4):
            src = b + 4 + k
            A(f"    v_lshlrev_b32 v{b+2*k}, 16, v{src}")
            A(f"    v_and_b32 v{b+2*k+1}, s12, v{src}")
    a = [ACC + j for j in range(8)]
    for u in range(U):
        lo = 64 * u
        for i in range(nld):
            b = xb(u, i)
            if hop and i == hop - 1:
                A(f"L_pad{2*u}:")
                A(f"    s_cbranch_scc1 L_pad{2*u+1}")
            wait_for(("x", u, i))
            if diag and u == 0 and i == 0:
                A("    s_memrealtime s[20:21]")
            if diag and u == U - 1 and i == nld - 1:
                A("    s_memrealtime s[22:23]")
            if late and u + 1 < U and i == late - 1:
                loads(u + 1)
            unpack(b)
            for k in range(4):
                x = f"v[{b+2*k}:{b+2*k+1}]"
                acc = f"v[{ACC+2*k}:{ACC+2*k+1}]"
                if i == 0:
                    A(f"    v_pk_mul_f32 {acc}, {x}, {x}")
                else:
                    A(f"    v_pk_fma_f32 {acc}, {x}, {x}, {acc}")
        if prio:
            A(f"    s_setprio {prio}")
            A("    s_nop 0")
        else:
            A("    s_nop 1")
        for k in range(4):
            A(f"    v_permlane32_swap_b32 v{a[2*k]}, v{a[2*k+1]}")
        for k in range(4):
            A(f"    v_add_f32 v{a[2*k]}, v{a[2*k]}, v{a[2*k+1]}")
        A("    s_nop 0")
        A(f"    v_permlane16_swap_b32 v{a[0]}, v{a[2]}")
        A(f"    v_permlane16_swap_b32 v{a[4]}, v{a[6]}")
        A(f"    v_add_f32 v{a[0]}, v{a[0]}, v{a[2]}")
        A(f"    v_add_f32 v{a[4]}, v{a[4]}, v{a[6]}")
        if nw == 10:
            A("    s_nop 0")
            A(f"    v_add_f32_dpp v{a[0]}, v{a[0]}, v{a[0]} row_ror:8 row_mask:0xf bank_mask:0xf")
            A(f"    v_add_f32_dpp v{a[4]}, v{a[4]}, v{a[4]} row_ror:8 row_mask:0xf bank_mask:0xf")
        A(f"    v_sqrt_f32 v{a[0]}, v{a[0]}")
        A(f"    v_sqrt_f32 v{a[4]}, v{a[4]}")
        A("    s_nop 0")
        A(f"    v_add_f32 v8, v{a[0]}, v{a[4]}")
        A(f"    v_mov_b32 v{a[2]}, v{a[0]}")
        A(f"    v_mov_b32 v{a[6]}, v{a[4]}")
        rors = [8, 4, 2, 1] if nw == 5 else [4, 2, 1]
        for r in rors:
            A(f"    v_add_f32_dpp v8, v8, v8 row_ror:{r} row_mask:0xf bank_mask:0xf")
            A("    s_nop 1")
        A("    v_add_f32_dpp v8, v8, v8 row_bcast:15 row_mask:0xa bank_mask:0xf")
        A("    s_nop 1")
        A("    v_add_f32_dpp v8, v8, v8 row_bcast:31 row_mask:0xc bank_mask:0xf")
        A("    s_mov_b32 exec_lo, 0")
        A("    s_mov_b32 exec_hi, 0x80000000")
        A(f"    ds_write_b32 v5, v8 offset:{lo}")
        A("    s_mov_b64 exec, -1")
        A(f"    v_permlane16_swap_b32 v{a[0]}, v{a[2]}")
        A(f"    v_permlane16_swap_b32 v{a[4]}, v{a[6]}")
        for k in range(4):
            A(f"    v_mov_b32 v{a[2*k+1]}, v{a[2*k]}")
        A("    s_nop 0")
        for k in range(4):
            A(f"    v_permlane32_swap_b32 v{a[2*k]}, v{a[2*k+1]}")
        if u == 0:
            wait_for(("b",))
            unpack(G)
            unpack(B)
        for k in range(4):
            A(f"    v_pk_mul_f32 v[{T+2*k}:{T+2*k+1}], v[{G+2*k}:{G+2*k+1}], v[{ACC+2*k}:{ACC+2*k+1}]")
        A("    s_waitcnt lgkmcnt(0)")
        A("    s_barrier")
        if diag and u == 0:
            A("    s_memrealtime s[40:41]")
        if nw == 5:
            A(f"    ds_read_b128 v[8:11], v6 offset:{lo}")
            A(f"    ds_read_b32 v12, v6 offset:{lo+16}")
            A("    s_waitcnt lgkmcnt(0)")
            A("    v_pk_add_f32 v[8:9], v[8:9], v[10:11]")
            A("    v_add_f32 v8, v8, v12")
            A("    v_add_f32 v8, v8, v9")
        else:
            A(f"    ds_read_b128 v[8:11], v6 offset:{lo}")
            A(f"    ds_read_b128 v[12:15], v6 offset:{lo+16}")
            A(f"    ds_read_b64 v[{ACC}:{ACC+1}], v6 offset:{lo+32}")
            A("    s_waitcnt lgkmcnt(0)")
            A("    v_pk_add_f32 v[8:9], v[8:9], v[10:11]")
            A("    v_pk_add_f32 v[12:13], v[12:13], v[14:15]")
            A(f"    v_pk_add_f32 v[8:9], v[8:9], v[{ACC}:{ACC+1}]")
            A("    v_pk_add_f32 v[8:9], v[8:9], v[12:13]")
            A("    v_add_f32 v8, v8, v9")
        A("    v_fmamk_f32 v8, v8, 0x3acccccd, v7       ; mean + 1e-6")
        A("    v_rcp_f32 v8, v8")
        A("    s_nop 0")
        for k in range(4):
            A(f"    v_pk_fma_f32 v[{T+2*k}:{T+2*k+1}], v[{T+2*k}:{T+2*k+1}], v[8:9], 1.0 op_sel_hi:[1,0,0]")
        for i in range(nld):
            b = xb(u, i)
            if hop and i == nld // 2:
                A(f"L_pad{2*u+1}:")
                A(f"    s_cbranch_scc1 " + (f"L_pad{2*u+2}" if u + 1 < U else "L_back"))
            for k in range(4):
                x = f"v[{b+2*k}:{b+2*k+1}]"
                A(f"    v_pk_fma_f32 {x}, {x}, v[{T+2*k}:{T+2*k+1}], v[{B+2*k}:{B+2*k+1}]")
            for k in range(4):
                A(f"    v_cvt_pk_bf16_f32 v{b+k}, v{b+2*k}, v{b+2*k+1}")
            ad, o = addr(u, i)
            A(f"    global_store_dwordx4 {ad}, v[{b}:{b+3}], s[10:11] offset:{o} {stf}".rstrip())
            vm.append(("s", u, i))
        if prio and u + 1 < U:
            A("    s_setprio 0")
    if diag:
        A("    s_memrealtime s[28:29]")
        A("    s_waitcnt vmcnt(0)")
        A("    s_memrealtime s[24:25]")
        A("    v_readfirstlane_b32 s30, v1")
        A("    s_waitcnt lgkmcnt(0)")
        names = dict(start="s18", karg="s26", first="s20", last="s22", issued="s28", end="s24", bar="s40")
        def q(dst, e):
            if e in ("0", "k2"):
                A(f"    s_mov_b32 {dst}, 0")
            elif "-" in e:
                x, y = e.split("-")
                A(f"    s_sub_u32 {dst}, {names[x]}, {names[y]}")
            else:
                A(f"    s_mov_b32 {dst}, {names[e]}")
        A(f"    s_mul_i32 s31, s2, {nw}")
        A("    s_add_u32 s31, s31, s30")
        if diag == 2:
            A("    s_lshl_b32 s31, s31, 5")
            A("    s_getreg_b32 s32, hwreg(HW_REG_HW_ID)")
            A("    s_getreg_b32 s33, hwreg(HW_REG_XCC_ID)")
            A("    s_lshl_b32 s33, s33, 28")
            A("    s_and_b32 s32, s32, 0xfffffff")
            A("    s_or_b32 s32, s32, s33")
            A("    s_mov_b64 exec, 1")
            for j, r in enumerate(["s18", "s26", "s20", "s22", "s40", "s28", "s24", "s32"]):
                A(f"    v_mov_b32 v{XB+j}, {r}")
            A("    v_mov_b32 v12, s31")
            A(f"    global_store_dwordx4 v12, v[{XB}:{XB+3}], s[16:17]")
            A(f"    global_store_dwordx4 v12, v[{XB+4}:{XB+7}], s[16:17] offset:16")
        else:
            q("s32", qa)
            q("s33", qb)
            A("    s_lshl_b32 s31, s31, 3")
            A("    s_mov_b64 exec, 1")
            A("    v_mov_b32 v10, s32")
            A("    v_mov_b32 v11, s33")
            A("    v_mov_b32 v12, s31")
            A("    global_store_dwordx2 v12, v[10:11], s[16:17]")
    A("L_end:")
    A("    s_endpgm")
    if diag == 1:
        nrec = grid * nw
        aop = "max" if amax else "min"
        bop = "min" if bmin else "max"
        A(".globl diag_kernel")
        A(".p2align 8")
        A(".type diag_kernel,@function")
        A("diag_kernel:")
        A("    s_memrealtime s[18:19]")
        A("    s_load_dwordx4 s[4:7], s[0:1], 32")
        A("    s_cmp_lg_u32 s2, 0")
        A("    s_cbranch_scc1 L_end2")
        A("    v_lshlrev_b32 v1, 3, v0")
        A("    s_waitcnt lgkmcnt(0)")
        A("    global_load_dwordx2 v[2:3], v1, s[6:7]")
        A("    s_waitcnt vmcnt(0)")
        A(f"    s_mov_b32 s8, {nrec//64 - 1}")
        A("L_rec:")
        A("    v_add_u32 v1, 512, v1")
        A("    global_load_dwordx2 v[4:5], v1, s[6:7]")
        A("    s_waitcnt vmcnt(0)")
        A(f"    v_{aop}_u32 v2, v2, v4")
        A(f"    v_{bop}_u32 v3, v3, v5")
        A("    s_sub_u32 s8, s8, 1")
        A("    s_cmp_lg_u32 s8, 0")
        A("    s_cbranch_scc1 L_rec")
        A("    s_nop 1")
        A("    v_readlane_b32 s10, v2, 0")
        A("    v_readlane_b32 s11, v3, 0")
        for l in range(1, 64):
            A(f"    v_readlane_b32 s12, v2, {l}")
            A(f"    v_readlane_b32 s13, v3, {l}")
            A("    s_nop 1")
            A(f"    s_{aop}_u32 s10, s10, s12")
            A(f"    s_{bop}_u32 s11, s11, s13")
        if qb == "k2":
            A("    s_mov_b32 s11, s18")
        A("    s_sub_u32 s34, s11, s10")
        A("    v_mov_b32 v10, s34")
        A("    v_mov_b32 v6, 0")
        A("    global_store_dword v6, v10, s[4:5]")
        A("    s_min_u32 s34, s34, 5000")
        A(f"    s_mul_i32 s34, s34, {K}")
        A("    s_add_u32 s34, s34, 3000")
        A("L_spin:")
        A("    s_memrealtime s[38:39]")
        A("    s_waitcnt lgkmcnt(0)")
        A("    s_sub_u32 s35, s38, s18")
        A("    s_cmp_lt_u32 s35, s34")
        A("    s_cbranch_scc1 L_spin")
        A("L_end2:")
        A("    s_endpgm")
    A('.section .rodata,"a"')
    A(".p2align 6")
    A(".amdhsa_kernel standalone__grn__sampling_kernel")
    A(f"  .amdhsa_next_free_vgpr {NV}")
    A(f"  .amdhsa_next_free_sgpr {48 if diag else 16}")
    A(f"  .amdhsa_accum_offset {(NV+3)//4*4}")
    A("  .amdhsa_group_segment_fixed_size 0")
    A("  .amdhsa_kernarg_size 48")
    A("  .amdhsa_user_sgpr_count 2")
    A("  .amdhsa_user_sgpr_kernarg_segment_ptr 1")
    A("  .amdhsa_system_sgpr_workgroup_id_x 1")
    if denorm:
        A("  .amdhsa_float_denorm_mode_32 3")
    A(".end_amdhsa_kernel")
    if diag == 1:
        A(".p2align 6")
        A(".amdhsa_kernel diag_kernel")
        A("  .amdhsa_next_free_vgpr 16")
        A("  .amdhsa_next_free_sgpr 48")
        A("  .amdhsa_accum_offset 16")
        A("  .amdhsa_group_segment_fixed_size 0")
        A("  .amdhsa_kernarg_size 48")
        A("  .amdhsa_user_sgpr_count 2")
        A("  .amdhsa_user_sgpr_kernarg_segment_ptr 1")
        A("  .amdhsa_system_sgpr_workgroup_id_x 1")
        A(".end_amdhsa_kernel")
    return "\n".join(L) + "\n"

if __name__ == "__main__":
    out = sys.argv[1]
    kw = {}
    for a in sys.argv[2:]:
        k, v = a.split("=", 1)
        v = v.replace("+", " ")
        kw[k] = int(v) if (v.isdigit() and k not in ("qa", "qb")) else v
    open(out, "w").write(gen(**kw))
```

```python
import sys

HEADER = """; Kernarg layout for this problem (48 bytes, ptrs only, base s[0:1]):
"""

def gen(nw=5, U=1, ldf="nt", stf="nt", lds=128, denorm=1, diag=0, K=20, qa="0", qb="0", amax=0, bmin=0,
        ustride=1, late=0, prio=0, al=1, hop=0, hopat=1, tlbw=0, lprio=0, pat="col", gbfirst=0):
    L = []
    A = L.append
    grid = 512 // U
    nld = 40 // nw
    lpr = 80 // nw
    lg = 4 if nw == 5 else 3
    nh = (nld + 3) // 4 if pat == "col" else nld
    A(HEADER.rstrip())
    if diag == 1:
        A(f"; @launch kernel=standalone__grn__sampling_kernel grid=({grid},1,1) block=({nw*64},1,1) lds={lds}")
        A(f"; @launch kernel=diag_kernel grid=(1,1,1) block=(64,1,1) lds=0")
    else:
        A(f"; @launch grid=({grid},1,1) block=({nw*64},1,1) lds={lds}")
    A('.amdgcn_target "amdgcn-amd-amdhsa--gfx950"')
    A(".text")
    A(".globl standalone__grn__sampling_kernel")
    if al:
        A(".p2align 12")
    A(".p2align 8")
    A(".type standalone__grn__sampling_kernel,@function")
    A("standalone__grn__sampling_kernel:")
    A("    s_load_dwordx8 s[4:11], s[0:1], 0        ; x, g, b, out")
    if diag:
        A("    s_memrealtime s[18:19]")
        A("    s_load_dwordx2 s[16:17], s[0:1], 40")
    A(f"    s_cmp_ge_u32 s2, {grid}")
    A("    s_cbranch_scc1 L_end")
    if lprio:
        A(f"    s_setprio {lprio}")
    A(f"    s_mul_i32 s3, s2, {40960*U if ustride else 40960}")
    ub = 40960 if ustride else 40960 * grid
    A("    v_lshrrev_b32 v1, 6, v0")
    A(f"    v_and_b32 v2, {lpr-1}, v0")
    A("    v_lshlrev_b32 v2, 4, v2")
    A(f"    v_lshl_add_u32 v2, v1, {lg+4}, v2          ; column byte offset")
    A(f"    v_bfe_u32 v3, v0, {lg}, {6-lg}")
    A(f"    v_mul_u32_u24 v3, {nld*1280 if pat == 'col' else 1280}, v3")
    AD = 16
    A(f"    v_add3_u32 v{AD}, v3, v2, s3")
    for u in range(U):
        for h in range(nh):
            if u or h:
                A(f"    v_add_u32 v{AD+u*nh+h}, {u*ub+h*(5120 if pat == 'col' else (64//lpr)*1280)}, v{AD}")
    XB = (AD + U * nh + 3) // 4 * 4
    ACC = XB + 8 * nld * U
    G = ACC + 8
    B = G + 8
    T = B + 8 if U > 1 else G
    NV = max(T, B) + 8
    def addr(u, i):
        if pat != "col":
            return f"v{AD+u*nh+i}", 0
        return f"v{AD+u*nh+i//4}", 1280 * (i % 4)
    def xb(u, i):
        return XB + 8 * (u * nld + i)
    def dohop():
        A("    s_cmp_eq_u32 0, 0")
        A("    s_branch L_pad0")
        A("L_back:")
        A("    s_cmp_eq_u32 0, 1")
    if hop and not hopat:
        dohop()
    A("    s_waitcnt lgkmcnt(0)")
    if diag:
        A("    s_memrealtime s[26:27]")
    vm = []
    def loads(u):
        for i in range(nld):
            a, o = addr(u, i)
            b = xb(u, i)
            A(f"    global_load_dwordx4 v[{b+4}:{b+7}], {a}, s[4:5] offset:{o} {ldf}".rstrip())
            vm.append(("x", u, i))
    def wait_for(tag):
        idx = vm.index(tag)
        n = len(vm) - 1 - idx
        A(f"    s_waitcnt vmcnt({n})")
    if tlbw == 2:
        A("    v_mov_b32 v13, s3")
        A(f"    global_load_dword v14, v13, s[10:11]"); vm.append(("t",))
    if gbfirst:
        A(f"    global_load_dwordx4 v[{G+4}:{G+7}], v2, s[6:7]"); vm.append(("g",))
        A(f"    global_load_dwordx4 v[{B+4}:{B+7}], v2, s[8:9]"); vm.append(("b",))
    loads(0)
    if tlbw == 1:
        A("    v_mov_b32 v13, s3")
        A(f"    global_load_dword v14, v13, s[10:11]"); vm.append(("t",))
    if not gbfirst:
        A(f"    global_load_dwordx4 v[{G+4}:{G+7}], v2, s[6:7]"); vm.append(("g",))
        A(f"    global_load_dwordx4 v[{B+4}:{B+7}], v2, s[8:9]"); vm.append(("b",))
    if not late:
        for u in range(1, U):
            loads(u)
    if lprio:
        A("    s_setprio 0")
    if hop and hopat:
        dohop()
    A("    v_lshlrev_b32 v5, 2, v1")
    A("    v_mov_b32 v6, 0")
    A("    v_mov_b32 v7, 0x358637bd                 ; 1e-6")
    A("    s_mov_b32 s12, 0xffff0000")
    def unpack(b):
        for k in range(4):
            src = b + 4 + k
            A(f"    v_lshlrev_b32 v{b+2*k}, 16, v{src}")
            A(f"    v_and_b32 v{b+2*k+1}, s12, v{src}")
    a = [ACC + j for j in range(8)]
    for u in range(U):
        lo = 64 * u
        for i in range(nld):
            b = xb(u, i)
            if hop and i == hop - 1:
                A(f"L_pad{2*u}:")
                A(f"    s_cbranch_scc1 L_pad{2*u+1}")
            wait_for(("x", u, i))
            if diag and u == 0 and i == 0:
                A("    s_memrealtime s[20:21]")
            if diag and u == U - 1 and i == nld - 1:
                A("    s_memrealtime s[22:23]")
            if late and u + 1 < U and i == late - 1:
                loads(u + 1)
            unpack(b)
            for k in range(4):
                x = f"v[{b+2*k}:{b+2*k+1}]"
                acc = f"v[{ACC+2*k}:{ACC+2*k+1}]"
                if i == 0:
                    A(f"    v_pk_mul_f32 {acc}, {x}, {x}")
                else:
                    A(f"    v_pk_fma_f32 {acc}, {x}, {x}, {acc}")
        if hop == 99 and u == 0:
            A("L_pad0:")
            A("    s_cbranch_scc1 L_back")
            A(f"    s_setprio {prio}" if prio else "    s_nop 0")
        elif prio:
            A(f"    s_setprio {prio}")
            A("    s_nop 0")
        else:
            A("    s_nop 1")
        for k in range(4):
            A(f"    v_permlane32_swap_b32 v{a[2*k]}, v{a[2*k+1]}")
        for k in range(4):
            A(f"    v_add_f32 v{a[2*k]}, v{a[2*k]}, v{a[2*k+1]}")
        A("    s_nop 0")
        A(f"    v_permlane16_swap_b32 v{a[0]}, v{a[2]}")
        A(f"    v_permlane16_swap_b32 v{a[4]}, v{a[6]}")
        A(f"    v_add_f32 v{a[0]}, v{a[0]}, v{a[2]}")
        A(f"    v_add_f32 v{a[4]}, v{a[4]}, v{a[6]}")
        if nw == 10:
            A("    s_nop 0")
            A(f"    v_add_f32_dpp v{a[0]}, v{a[0]}, v{a[0]} row_ror:8 row_mask:0xf bank_mask:0xf")
            A(f"    v_add_f32_dpp v{a[4]}, v{a[4]}, v{a[4]} row_ror:8 row_mask:0xf bank_mask:0xf")
        A(f"    v_sqrt_f32 v{a[0]}, v{a[0]}")
        A(f"    v_sqrt_f32 v{a[4]}, v{a[4]}")
        A("    s_nop 0")
        A(f"    v_add_f32 v8, v{a[0]}, v{a[4]}")
        A(f"    v_mov_b32 v{a[2]}, v{a[0]}")
        A(f"    v_mov_b32 v{a[6]}, v{a[4]}")
        rors = [8, 4, 2, 1] if nw == 5 else [4, 2, 1]
        for r in rors:
            A(f"    v_add_f32_dpp v8, v8, v8 row_ror:{r} row_mask:0xf bank_mask:0xf")
            A("    s_nop 1")
        A("    v_add_f32_dpp v8, v8, v8 row_bcast:15 row_mask:0xa bank_mask:0xf")
        A("    s_nop 1")
        A("    v_add_f32_dpp v8, v8, v8 row_bcast:31 row_mask:0xc bank_mask:0xf")
        A("    s_mov_b32 exec_lo, 0")
        A("    s_mov_b32 exec_hi, 0x80000000")
        A(f"    ds_write_b32 v5, v8 offset:{lo}")
        A("    s_mov_b64 exec, -1")
        A(f"    v_permlane16_swap_b32 v{a[0]}, v{a[2]}")
        A(f"    v_permlane16_swap_b32 v{a[4]}, v{a[6]}")
        for k in range(4):
            A(f"    v_mov_b32 v{a[2*k+1]}, v{a[2*k]}")
        A("    s_nop 0")
        for k in range(4):
            A(f"    v_permlane32_swap_b32 v{a[2*k]}, v{a[2*k+1]}")
        if u == 0:
            wait_for(("b",))
            unpack(G)
            unpack(B)
        for k in range(4):
            A(f"    v_pk_mul_f32 v[{T+2*k}:{T+2*k+1}], v[{G+2*k}:{G+2*k+1}], v[{ACC+2*k}:{ACC+2*k+1}]")
        A("    s_waitcnt lgkmcnt(0)")
        A("    s_barrier")
        if diag and u == 0:
            A("    s_memrealtime s[40:41]")
        if nw == 5:
            A(f"    ds_read_b128 v[8:11], v6 offset:{lo}")
            A(f"    ds_read_b32 v12, v6 offset:{lo+16}")
            A("    s_waitcnt lgkmcnt(0)")
            A("    v_pk_add_f32 v[8:9], v[8:9], v[10:11]")
            A("    v_add_f32 v8, v8, v12")
            A("    v_add_f32 v8, v8, v9")
        else:
            A(f"    ds_read_b128 v[8:11], v6 offset:{lo}")
            A(f"    ds_read_b128 v[12:15], v6 offset:{lo+16}")
            A(f"    ds_read_b64 v[{ACC}:{ACC+1}], v6 offset:{lo+32}")
            A("    s_waitcnt lgkmcnt(0)")
            A("    v_pk_add_f32 v[8:9], v[8:9], v[10:11]")
            A("    v_pk_add_f32 v[12:13], v[12:13], v[14:15]")
            A(f"    v_pk_add_f32 v[8:9], v[8:9], v[{ACC}:{ACC+1}]")
            A("    v_pk_add_f32 v[8:9], v[8:9], v[12:13]")
            A("    v_add_f32 v8, v8, v9")
        A("    v_fmamk_f32 v8, v8, 0x3acccccd, v7       ; mean + 1e-6")
        A("    v_rcp_f32 v8, v8")
        A("    s_nop 0")
        for k in range(4):
            A(f"    v_pk_fma_f32 v[{T+2*k}:{T+2*k+1}], v[{T+2*k}:{T+2*k+1}], v[8:9], 1.0 op_sel_hi:[1,0,0]")
        for i in range(nld):
            b = xb(u, i)
            if hop and hop != 99 and i == nld // 2:
                A(f"L_pad{2*u+1}:")
                A(f"    s_cbranch_scc1 " + (f"L_pad{2*u+2}" if u + 1 < U else "L_back"))
            for k in range(4):
                x = f"v[{b+2*k}:{b+2*k+1}]"
                A(f"    v_pk_fma_f32 {x}, {x}, v[{T+2*k}:{T+2*k+1}], v[{B+2*k}:{B+2*k+1}]")
            for k in range(4):
                A(f"    v_cvt_pk_bf16_f32 v{b+k}, v{b+2*k}, v{b+2*k+1}")
            ad, o = addr(u, i)
            A(f"    global_store_dwordx4 {ad}, v[{b}:{b+3}], s[10:11] offset:{o} {stf}".rstrip())
            vm.append(("s", u, i))
        if prio and u + 1 < U:
            A("    s_setprio 0")
    if diag:
        A("    s_memrealtime s[28:29]")
        A("    s_waitcnt vmcnt(0)")
        A("    s_memrealtime s[24:25]")
        A("    v_readfirstlane_b32 s30, v1")
        A("    s_waitcnt lgkmcnt(0)")
        names = dict(start="s18", karg="s26", first="s20", last="s22", issued="s28", end="s24", bar="s40")
        def q(dst, e):
            if e in ("0", "k2"):
                A(f"    s_mov_b32 {dst}, 0")
            elif "-" in e:
                x, y = e.split("-")
                A(f"    s_sub_u32 {dst}, {names[x]}, {names[y]}")
            else:
                A(f"    s_mov_b32 {dst}, {names[e]}")
        A(f"    s_mul_i32 s31, s2, {nw}")
        A("    s_add_u32 s31, s31, s30")
        if diag == 2:
            A("    s_lshl_b32 s31, s31, 5")
            A("    s_getreg_b32 s32, hwreg(HW_REG_HW_ID)")
            A("    s_getreg_b32 s33, hwreg(HW_REG_XCC_ID)")
            A("    s_lshl_b32 s33, s33, 28")
            A("    s_and_b32 s32, s32, 0xfffffff")
            A("    s_or_b32 s32, s32, s33")
            A("    s_mov_b64 exec, 1")
            for j, r in enumerate(["s18", "s26", "s20", "s22", "s40", "s28", "s24", "s32"]):
                A(f"    v_mov_b32 v{XB+j}, {r}")
            A("    v_mov_b32 v12, s31")
            A(f"    global_store_dwordx4 v12, v[{XB}:{XB+3}], s[16:17]")
            A(f"    global_store_dwordx4 v12, v[{XB+4}:{XB+7}], s[16:17] offset:16")
        else:
            q("s32", qa)
            q("s33", qb)
            A("    s_lshl_b32 s31, s31, 3")
            A("    s_mov_b64 exec, 1")
            A("    v_mov_b32 v10, s32")
            A("    v_mov_b32 v11, s33")
            A("    v_mov_b32 v12, s31")
            A("    global_store_dwordx2 v12, v[10:11], s[16:17]")
    A("L_end:")
    A("    s_endpgm")
    if diag == 1:
        nrec = grid * nw
        aop = "max" if amax else "min"
        bop = "min" if bmin else "max"
        A(".globl diag_kernel")
        A(".p2align 8")
        A(".type diag_kernel,@function")
        A("diag_kernel:")
        A("    s_memrealtime s[18:19]")
        A("    s_load_dwordx4 s[4:7], s[0:1], 32")
        A("    s_cmp_lg_u32 s2, 0")
        A("    s_cbranch_scc1 L_end2")
        A("    v_lshlrev_b32 v1, 3, v0")
        A("    s_waitcnt lgkmcnt(0)")
        A("    global_load_dwordx2 v[2:3], v1, s[6:7]")
        A("    s_waitcnt vmcnt(0)")
        A(f"    s_mov_b32 s8, {nrec//64 - 1}")
        A("L_rec:")
        A("    v_add_u32 v1, 512, v1")
        A("    global_load_dwordx2 v[4:5], v1, s[6:7]")
        A("    s_waitcnt vmcnt(0)")
        A(f"    v_{aop}_u32 v2, v2, v4")
        A(f"    v_{bop}_u32 v3, v3, v5")
        A("    s_sub_u32 s8, s8, 1")
        A("    s_cmp_lg_u32 s8, 0")
        A("    s_cbranch_scc1 L_rec")
        A("    s_nop 1")
        A("    v_readlane_b32 s10, v2, 0")
        A("    v_readlane_b32 s11, v3, 0")
        for l in range(1, 64):
            A(f"    v_readlane_b32 s12, v2, {l}")
            A(f"    v_readlane_b32 s13, v3, {l}")
            A("    s_nop 1")
            A(f"    s_{aop}_u32 s10, s10, s12")
            A(f"    s_{bop}_u32 s11, s11, s13")
        if qb == "k2":
            A("    s_mov_b32 s11, s18")
        A("    s_sub_u32 s34, s11, s10")
        A("    v_mov_b32 v10, s34")
        A("    v_mov_b32 v6, 0")
        A("    global_store_dword v6, v10, s[4:5]")
        A("    s_min_u32 s34, s34, 5000")
        A(f"    s_mul_i32 s34, s34, {K}")
        A("    s_add_u32 s34, s34, 3000")
        A("L_spin:")
        A("    s_memrealtime s[38:39]")
        A("    s_waitcnt lgkmcnt(0)")
        A("    s_sub_u32 s35, s38, s18")
        A("    s_cmp_lt_u32 s35, s34")
        A("    s_cbranch_scc1 L_spin")
        A("L_end2:")
        A("    s_endpgm")
    A('.section .rodata,"a"')
    A(".p2align 6")
    A(".amdhsa_kernel standalone__grn__sampling_kernel")
    A(f"  .amdhsa_next_free_vgpr {NV}")
    A(f"  .amdhsa_next_free_sgpr {48 if diag else 16}")
    A(f"  .amdhsa_accum_offset {(NV+3)//4*4}")
    A("  .amdhsa_group_segment_fixed_size 0")
    A("  .amdhsa_kernarg_size 48")
    A("  .amdhsa_user_sgpr_count 2")
    A("  .amdhsa_user_sgpr_kernarg_segment_ptr 1")
    A("  .amdhsa_system_sgpr_workgroup_id_x 1")
    if denorm:
        A("  .amdhsa_float_denorm_mode_32 3")
    A(".end_amdhsa_kernel")
    if diag == 1:
        A(".p2align 6")
        A(".amdhsa_kernel diag_kernel")
        A("  .amdhsa_next_free_vgpr 16")
        A("  .amdhsa_next_free_sgpr 48")
        A("  .amdhsa_accum_offset 16")
        A("  .amdhsa_group_segment_fixed_size 0")
        A("  .amdhsa_kernarg_size 48")
        A("  .amdhsa_user_sgpr_count 2")
        A("  .amdhsa_user_sgpr_kernarg_segment_ptr 1")
        A("  .amdhsa_system_sgpr_workgroup_id_x 1")
        A(".end_amdhsa_kernel")
    return "\n".join(L) + "\n"

if __name__ == "__main__":
    out = sys.argv[1]
    kw = {}
    for a in sys.argv[2:]:
        k, v = a.split("=", 1)
        v = v.replace("+", " ")
        kw[k] = int(v) if (v.isdigit() and k not in ("qa", "qb")) else v
    open(out, "w").write(gen(**kw))
```

```python
import sys

HEADER = """; Kernarg layout for this problem (48 bytes, ptrs only, base s[0:1]):
"""

def gen(nw=5, U=1, ldf="nt", stf="nt", lds=128, denorm=1, diag=0, K=20, qa="0", qb="0", amax=0, bmin=0,
        ustride=1, late=0, prio=0, al=1, hop=0, hopat=1, tlbw=0, lprio=0, pat="col", gbfirst=0, win=0, stf2=None, qs=0):
    L = []
    A = L.append
    grid = 512 // U
    nld = 40 // nw
    lpr = 80 // nw
    lg = 4 if nw == 5 else 3
    nh = (nld + 3) // 4 if pat == "col" else nld
    A(HEADER.rstrip())
    if diag == 1:
        A(f"; @launch kernel=standalone__grn__sampling_kernel grid=({grid},1,1) block=({nw*64},1,1) lds={lds}")
        A(f"; @launch kernel=diag_kernel grid=(1,1,1) block=(64,1,1) lds=0")
    else:
        A(f"; @launch grid=({grid},1,1) block=({nw*64},1,1) lds={lds}")
    A('.amdgcn_target "amdgcn-amd-amdhsa--gfx950"')
    A(".text")
    A(".globl standalone__grn__sampling_kernel")
    if al:
        A(".p2align 12")
    A(".p2align 8")
    A(".type standalone__grn__sampling_kernel,@function")
    A("standalone__grn__sampling_kernel:")
    A("    s_load_dwordx8 s[4:11], s[0:1], 0        ; x, g, b, out")
    if diag:
        A("    s_memrealtime s[18:19]")
        A("    s_load_dwordx2 s[16:17], s[0:1], 40")
    A(f"    s_cmp_ge_u32 s2, {grid}")
    A("    s_cbranch_scc1 L_end")
    if lprio:
        A(f"    s_setprio {lprio}")
    A(f"    s_mul_i32 s3, s2, {40960*U if ustride else 40960}")
    ub = 40960 if ustride else 40960 * grid
    A("    v_lshrrev_b32 v1, 6, v0")
    A(f"    v_and_b32 v2, {lpr-1}, v0")
    A("    v_lshlrev_b32 v2, 4, v2")
    A(f"    v_lshl_add_u32 v2, v1, {lg+4}, v2          ; column byte offset")
    A(f"    v_bfe_u32 v3, v0, {lg}, {6-lg}")
    A(f"    v_mul_u32_u24 v3, {nld*1280 if pat == 'col' else 1280}, v3")
    AD = 16
    A(f"    v_add3_u32 v{AD}, v3, v2, s3")
    for u in range(U):
        for h in range(nh):
            if u or h:
                A(f"    v_add_u32 v{AD+u*nh+h}, {u*ub+h*(5120 if pat == 'col' else (64//lpr)*1280)}, v{AD}")
    XB = (AD + U * nh + 3) // 4 * 4
    ACC = XB + 8 * nld * U
    G = ACC + 8
    B = G + 8
    T = B + 8 if U > 1 else G
    NV = max(T, B) + 8
    def addr(u, i):
        if pat != "col":
            return f"v{AD+u*nh+i}", 0
        return f"v{AD+u*nh+i//4}", 1280 * (i % 4)
    def xb(u, i):
        return XB + 8 * (u * nld + i)
    def dohop():
        A("    s_cmp_eq_u32 0, 0")
        A("    s_branch L_pad0")
        A("L_back:")
        A("    s_cmp_eq_u32 0, 1")
    if hop and not hopat:
        dohop()
    A("    s_waitcnt lgkmcnt(0)")
    if diag:
        A("    s_memrealtime s[26:27]")
    vm = []
    def loads(u):
        for i in range(nld):
            a, o = addr(u, i)
            b = xb(u, i)
            A(f"    global_load_dwordx4 v[{b+4}:{b+7}], {a}, s[4:5] offset:{o} {ldf}".rstrip())
            vm.append(("x", u, i))
    def wait_for(tag):
        idx = vm.index(tag)
        n = len(vm) - 1 - idx
        A(f"    s_waitcnt vmcnt({n})")
    if tlbw == 2:
        A("    v_mov_b32 v13, s3")
        A(f"    global_load_dword v14, v13, s[10:11]"); vm.append(("t",))
    if gbfirst:
        A(f"    global_load_dwordx4 v[{G+4}:{G+7}], v2, s[6:7]"); vm.append(("g",))
        A(f"    global_load_dwordx4 v[{B+4}:{B+7}], v2, s[8:9]"); vm.append(("b",))
    loads(0)
    if tlbw == 1:
        A("    v_mov_b32 v13, s3")
        A(f"    global_load_dword v14, v13, s[10:11]"); vm.append(("t",))
    if not gbfirst:
        A(f"    global_load_dwordx4 v[{G+4}:{G+7}], v2, s[6:7]"); vm.append(("g",))
        A(f"    global_load_dwordx4 v[{B+4}:{B+7}], v2, s[8:9]"); vm.append(("b",))
    if not late:
        for u in range(1, U):
            loads(u)
    if lprio:
        A("    s_setprio 0")
    if hop and hopat:
        dohop()
    A("    v_lshlrev_b32 v5, 2, v1")
    A("    v_mov_b32 v6, 0")
    A("    v_mov_b32 v7, 0x358637bd                 ; 1e-6")
    A("    s_mov_b32 s12, 0xffff0000")
    def unpack(b):
        for k in range(4):
            src = b + 4 + k
            A(f"    v_lshlrev_b32 v{b+2*k}, 16, v{src}")
            A(f"    v_and_b32 v{b+2*k+1}, s12, v{src}")
    a = [ACC + j for j in range(8)]
    for u in range(U):
        lo = 64 * u
        for i in range(nld):
            b = xb(u, i)
            if hop and i == hop - 1:
                A(f"L_pad{2*u}:")
                A(f"    s_cbranch_scc1 L_pad{2*u+1}")
            wait_for(("x", u, i))
            if diag and u == 0 and i == 0:
                A("    s_memrealtime s[20:21]")
            if diag and u == U - 1 and i == nld - 1:
                A("    s_memrealtime s[22:23]")
            if late and u + 1 < U and i == late - 1:
                loads(u + 1)
            unpack(b)
            for k in range(4):
                x = f"v[{b+2*k}:{b+2*k+1}]"
                acc = f"v[{ACC+2*k}:{ACC+2*k+1}]"
                if i == 0:
                    A(f"    v_pk_mul_f32 {acc}, {x}, {x}")
                else:
                    A(f"    v_pk_fma_f32 {acc}, {x}, {x}, {acc}")
        if hop == 99 and u == 0:
            A("L_pad0:")
            A("    s_cbranch_scc1 L_back")
            A(f"    s_setprio {prio}" if prio else "    s_nop 0")
        elif prio:
            A(f"    s_setprio {prio}")
            A("    s_nop 0")
        else:
            A("    s_nop 1")
        for k in range(4):
            A(f"    v_permlane32_swap_b32 v{a[2*k]}, v{a[2*k+1]}")
        for k in range(4):
            A(f"    v_add_f32 v{a[2*k]}, v{a[2*k]}, v{a[2*k+1]}")
        A("    s_nop 0")
        A(f"    v_permlane16_swap_b32 v{a[0]}, v{a[2]}")
        A(f"    v_permlane16_swap_b32 v{a[4]}, v{a[6]}")
        A(f"    v_add_f32 v{a[0]}, v{a[0]}, v{a[2]}")
        A(f"    v_add_f32 v{a[4]}, v{a[4]}, v{a[6]}")
        if nw == 10:
            A("    s_nop 0")
            A(f"    v_add_f32_dpp v{a[0]}, v{a[0]}, v{a[0]} row_ror:8 row_mask:0xf bank_mask:0xf")
            A(f"    v_add_f32_dpp v{a[4]}, v{a[4]}, v{a[4]} row_ror:8 row_mask:0xf bank_mask:0xf")
        A(f"    v_sqrt_f32 v{a[0]}, v{a[0]}")
        A(f"    v_sqrt_f32 v{a[4]}, v{a[4]}")
        A("    s_nop 0")
        A(f"    v_add_f32 v8, v{a[0]}, v{a[4]}")
        A(f"    v_mov_b32 v{a[2]}, v{a[0]}")
        A(f"    v_mov_b32 v{a[6]}, v{a[4]}")
        rors = [8, 4, 2, 1] if nw == 5 else [4, 2, 1]
        for r in rors:
            A(f"    v_add_f32_dpp v8, v8, v8 row_ror:{r} row_mask:0xf bank_mask:0xf")
            A("    s_nop 1")
        A("    v_add_f32_dpp v8, v8, v8 row_bcast:15 row_mask:0xa bank_mask:0xf")
        A("    s_nop 1")
        A("    v_add_f32_dpp v8, v8, v8 row_bcast:31 row_mask:0xc bank_mask:0xf")
        A("    s_mov_b32 exec_lo, 0")
        A("    s_mov_b32 exec_hi, 0x80000000")
        A(f"    ds_write_b32 v5, v8 offset:{lo}")
        A("    s_mov_b64 exec, -1")
        A(f"    v_permlane16_swap_b32 v{a[0]}, v{a[2]}")
        A(f"    v_permlane16_swap_b32 v{a[4]}, v{a[6]}")
        for k in range(4):
            A(f"    v_mov_b32 v{a[2*k+1]}, v{a[2*k]}")
        A("    s_nop 0")
        for k in range(4):
            A(f"    v_permlane32_swap_b32 v{a[2*k]}, v{a[2*k+1]}")
        if u == 0:
            wait_for(("b",))
            unpack(G)
            unpack(B)
        for k in range(4):
            A(f"    v_pk_mul_f32 v[{T+2*k}:{T+2*k+1}], v[{G+2*k}:{G+2*k+1}], v[{ACC+2*k}:{ACC+2*k+1}]")
        A("    s_waitcnt lgkmcnt(0)")
        A("    s_barrier")
        if diag and u == 0:
            A("    s_memrealtime s[40:41]")
        if nw == 5:
            A(f"    ds_read_b128 v[8:11], v6 offset:{lo}")
            A(f"    ds_read_b32 v12, v6 offset:{lo+16}")
            A("    s_waitcnt lgkmcnt(0)")
            A("    v_pk_add_f32 v[8:9], v[8:9], v[10:11]")
            A("    v_add_f32 v8, v8, v12")
            A("    v_add_f32 v8, v8, v9")
        else:
            A(f"    ds_read_b128 v[8:11], v6 offset:{lo}")
            A(f"    ds_read_b128 v[12:15], v6 offset:{lo+16}")
            A(f"    ds_read_b64 v[{ACC}:{ACC+1}], v6 offset:{lo+32}")
            A("    s_waitcnt lgkmcnt(0)")
            A("    v_pk_add_f32 v[8:9], v[8:9], v[10:11]")
            A("    v_pk_add_f32 v[12:13], v[12:13], v[14:15]")
            A(f"    v_pk_add_f32 v[8:9], v[8:9], v[{ACC}:{ACC+1}]")
            A("    v_pk_add_f32 v[8:9], v[8:9], v[12:13]")
            A("    v_add_f32 v8, v8, v9")
        A("    v_fmamk_f32 v8, v8, 0x3acccccd, v7       ; mean + 1e-6")
        A("    v_rcp_f32 v8, v8")
        A("    s_nop 0")
        for k in range(4):
            A(f"    v_pk_fma_f32 v[{T+2*k}:{T+2*k+1}], v[{T+2*k}:{T+2*k+1}], v[8:9], 1.0 op_sel_hi:[1,0,0]")
        for i in range(nld):
            b = xb(u, i)
            if hop and hop != 99 and i == nld // 2:
                A(f"L_pad{2*u+1}:")
                A(f"    s_cbranch_scc1 " + (f"L_pad{2*u+2}" if u + 1 < U else "L_back"))
            for k in range(4):
                x = f"v[{b+2*k}:{b+2*k+1}]"
                A(f"    v_pk_fma_f32 {x}, {x}, v[{T+2*k}:{T+2*k+1}], v[{B+2*k}:{B+2*k+1}]")
            for k in range(4):
                A(f"    v_cvt_pk_bf16_f32 v{b+k}, v{b+2*k}, v{b+2*k+1}")
            ad, o = addr(u, i)
            if win and i >= win:
                A(f"    s_waitcnt vmcnt({win-1})")
            fl = stf2 if (stf2 is not None and i >= nld // 2) else stf
            A(f"    global_store_dwordx4 {ad}, v[{b}:{b+3}], s[10:11] offset:{o} {fl}".rstrip())
            vm.append(("s", u, i))
        if prio and u + 1 < U:
            A("    s_setprio 0")
    if diag:
        A("    s_memrealtime s[28:29]")
        A("    s_waitcnt vmcnt(0)")
        A("    s_memrealtime s[24:25]")
        A("    v_readfirstlane_b32 s30, v1")
        A("    s_waitcnt lgkmcnt(0)")
        names = dict(start="s18", karg="s26", first="s20", last="s22", issued="s28", end="s24", bar="s40")
        def q(dst, e):
            if e in ("0", "k2"):
                A(f"    s_mov_b32 {dst}, 0")
            elif "-" in e:
                x, y = e.split("-")
                A(f"    s_sub_u32 {dst}, {names[x]}, {names[y]}")
            else:
                A(f"    s_mov_b32 {dst}, {names[e]}")
        A(f"    s_mul_i32 s31, s2, {nw}")
        A("    s_add_u32 s31, s31, s30")
        if diag == 2:
            A("    s_lshl_b32 s31, s31, 5")
            A("    s_getreg_b32 s32, hwreg(HW_REG_HW_ID)")
            A("    s_getreg_b32 s33, hwreg(HW_REG_XCC_ID)")
            A("    s_lshl_b32 s33, s33, 28")
            A("    s_and_b32 s32, s32, 0xfffffff")
            A("    s_or_b32 s32, s32, s33")
            A("    s_mov_b64 exec, 1")
            for j, r in enumerate(["s18", "s26", "s20", "s22", "s40", "s28", "s24", "s32"]):
                A(f"    v_mov_b32 v{XB+j}, {r}")
            A("    v_mov_b32 v12, s31")
            A(f"    global_store_dwordx4 v12, v[{XB}:{XB+3}], s[16:17]")
            A(f"    global_store_dwordx4 v12, v[{XB+4}:{XB+7}], s[16:17] offset:16")
        else:
            q("s32", qa)
            q("s33", qb)
            A("    s_lshl_b32 s31, s31, 3")
            A("    s_mov_b64 exec, 1")
            A("    v_mov_b32 v10, s32")
            A("    v_mov_b32 v11, s33")
            A("    v_mov_b32 v12, s31")
            A("    global_store_dwordx2 v12, v[10:11], s[16:17]")
    A("L_end:")
    A("    s_endpgm")
    if diag == 1:
        nrec = grid * nw
        aop = "max" if amax else "min"
        bop = "min" if bmin else "max"
        A(".globl diag_kernel")
        A(".p2align 8")
        A(".type diag_kernel,@function")
        A("diag_kernel:")
        A("    s_memrealtime s[18:19]")
        A("    s_load_dwordx4 s[4:7], s[0:1], 32")
        A("    s_cmp_lg_u32 s2, 0")
        A("    s_cbranch_scc1 L_end2")
        A("    v_lshlrev_b32 v1, 3, v0")
        A("    s_waitcnt lgkmcnt(0)")
        A("    global_load_dwordx2 v[2:3], v1, s[6:7]")
        A("    s_waitcnt vmcnt(0)")
        A(f"    s_mov_b32 s8, {nrec//64 - 1}")
        A("L_rec:")
        A("    v_add_u32 v1, 512, v1")
        A("    global_load_dwordx2 v[4:5], v1, s[6:7]")
        A("    s_waitcnt vmcnt(0)")
        A(f"    v_{aop}_u32 v2, v2, v4")
        A(f"    v_{bop}_u32 v3, v3, v5")
        A("    s_sub_u32 s8, s8, 1")
        A("    s_cmp_lg_u32 s8, 0")
        A("    s_cbranch_scc1 L_rec")
        A("    s_nop 1")
        A("    v_readlane_b32 s10, v2, 0")
        A("    v_readlane_b32 s11, v3, 0")
        for l in range(1, 64):
            A(f"    v_readlane_b32 s12, v2, {l}")
            A(f"    v_readlane_b32 s13, v3, {l}")
            A("    s_nop 1")
            A(f"    s_{aop}_u32 s10, s10, s12")
            A(f"    s_{bop}_u32 s11, s11, s13")
        if qb == "k2":
            A("    s_mov_b32 s11, s18")
        A("    s_sub_u32 s34, s11, s10")
        A("    v_mov_b32 v10, s34")
        A("    v_mov_b32 v6, 0")
        A("    global_store_dword v6, v10, s[4:5]")
        A("    s_min_u32 s34, s34, 5000")
        if qs:
            A(f"    s_lshr_b32 s34, s34, {qs}")
        A(f"    s_mul_i32 s34, s34, {K}")
        A("    s_add_u32 s34, s34, 3000")
        A("L_spin:")
        A("    s_memrealtime s[38:39]")
        A("    s_waitcnt lgkmcnt(0)")
        A("    s_sub_u32 s35, s38, s18")
        A("    s_cmp_lt_u32 s35, s34")
        A("    s_cbranch_scc1 L_spin")
        A("L_end2:")
        A("    s_endpgm")
    A('.section .rodata,"a"')
    A(".p2align 6")
    A(".amdhsa_kernel standalone__grn__sampling_kernel")
    A(f"  .amdhsa_next_free_vgpr {NV}")
    A(f"  .amdhsa_next_free_sgpr {48 if diag else 16}")
    A(f"  .amdhsa_accum_offset {(NV+3)//4*4}")
    A("  .amdhsa_group_segment_fixed_size 0")
    A("  .amdhsa_kernarg_size 48")
    A("  .amdhsa_user_sgpr_count 2")
    A("  .amdhsa_user_sgpr_kernarg_segment_ptr 1")
    A("  .amdhsa_system_sgpr_workgroup_id_x 1")
    if denorm:
        A("  .amdhsa_float_denorm_mode_32 3")
    A(".end_amdhsa_kernel")
    if diag == 1:
        A(".p2align 6")
        A(".amdhsa_kernel diag_kernel")
        A("  .amdhsa_next_free_vgpr 16")
        A("  .amdhsa_next_free_sgpr 48")
        A("  .amdhsa_accum_offset 16")
        A("  .amdhsa_group_segment_fixed_size 0")
        A("  .amdhsa_kernarg_size 48")
        A("  .amdhsa_user_sgpr_count 2")
        A("  .amdhsa_user_sgpr_kernarg_segment_ptr 1")
        A("  .amdhsa_system_sgpr_workgroup_id_x 1")
        A(".end_amdhsa_kernel")
    return "\n".join(L) + "\n"

if __name__ == "__main__":
    out = sys.argv[1]
    kw = {}
    for a in sys.argv[2:]:
        k, v = a.split("=", 1)
        v = v.replace("+", " ")
        kw[k] = int(v) if (v.isdigit() and k not in ("qa", "qb")) else v
    open(out, "w").write(gen(**kw))
```

```python
import sys

HEADER = """; Kernarg layout for this problem (48 bytes, ptrs only, base s[0:1]):
"""

def gen(nw=5, U=1, ldf="nt", stf="nt", lds=128, denorm=1, diag=0, K=20, qa="0", qb="0", amax=0, bmin=0,
        ustride=1, late=0, prio=0, al=1, hop=0, hopat=1, tlbw=0, lprio=0, pat="col", gbfirst=0, win=0, stf2=None, qs=0, perm=0):
    L = []
    A = L.append
    grid = 512 // U
    nld = 40 // nw
    lpr = 80 // nw
    lg = 4 if nw == 5 else 3
    nh = (nld + 3) // 4 if pat == "col" else nld
    A(HEADER.rstrip())
    if diag == 1:
        A(f"; @launch kernel=standalone__grn__sampling_kernel grid=({grid},1,1) block=({nw*64},1,1) lds={lds}")
        A(f"; @launch kernel=diag_kernel grid=(1,1,1) block=(64,1,1) lds=0")
    else:
        A(f"; @launch grid=({grid},1,1) block=({nw*64},1,1) lds={lds}")
    A('.amdgcn_target "amdgcn-amd-amdhsa--gfx950"')
    A(".text")
    A(".globl standalone__grn__sampling_kernel")
    if al:
        A(".p2align 12")
    A(".p2align 8")
    A(".type standalone__grn__sampling_kernel,@function")
    A("standalone__grn__sampling_kernel:")
    A("    s_load_dwordx8 s[4:11], s[0:1], 0        ; x, g, b, out")
    if diag:
        A("    s_memrealtime s[18:19]")
        A("    s_load_dwordx2 s[16:17], s[0:1], 40")
    A(f"    s_cmp_ge_u32 s2, {grid}")
    A("    s_cbranch_scc1 L_end")
    if lprio:
        A(f"    s_setprio {lprio}")
    if perm == 1:
        A("    s_bfe_u32 s3, s2, 0x10003")
        A("    s_xor_b32 s3, s3, s2")
        A("    s_mul_i32 s3, s3, 40960")
    elif perm == 2:
        A("    s_xor_b32 s3, s2, 1")
        A("    s_mul_i32 s3, s3, 40960")
    elif perm == 3:
        A("    s_and_b32 s3, s2, 7")
        A("    s_lshl_b32 s3, s3, 6")
        A("    s_lshr_b32 s13, s2, 3")
        A("    s_add_u32 s3, s3, s13")
        A("    s_mul_i32 s3, s3, 40960")
    elif perm == 4:
        A("    s_lshr_b32 s13, s2, 3")
        A("    s_add_u32 s3, s2, s13")
        A("    s_and_b32 s3, s3, 7")
        A("    s_and_b32 s13, s2, 0x1f8")
        A("    s_or_b32 s3, s3, s13")
        A("    s_mul_i32 s3, s3, 40960")
    else:
        A(f"    s_mul_i32 s3, s2, {40960*U if ustride else 40960}")
    ub = 40960 if ustride else 40960 * grid
    A("    v_lshrrev_b32 v1, 6, v0")
    A(f"    v_and_b32 v2, {lpr-1}, v0")
    A("    v_lshlrev_b32 v2, 4, v2")
    A(f"    v_lshl_add_u32 v2, v1, {lg+4}, v2          ; column byte offset")
    A(f"    v_bfe_u32 v3, v0, {lg}, {6-lg}")
    A(f"    v_mul_u32_u24 v3, {nld*1280 if pat == 'col' else 1280}, v3")
    AD = 16
    A(f"    v_add3_u32 v{AD}, v3, v2, s3")
    for u in range(U):
        for h in range(nh):
            if u or h:
                A(f"    v_add_u32 v{AD+u*nh+h}, {u*ub+h*(5120 if pat == 'col' else (64//lpr)*1280)}, v{AD}")
    XB = (AD + U * nh + 3) // 4 * 4
    ACC = XB + 8 * nld * U
    G = ACC + 8
    B = G + 8
    T = B + 8 if U > 1 else G
    NV = max(T, B) + 8
    def addr(u, i):
        if pat != "col":
            return f"v{AD+u*nh+i}", 0
        return f"v{AD+u*nh+i//4}", 1280 * (i % 4)
    def xb(u, i):
        return XB + 8 * (u * nld + i)
    def dohop():
        A("    s_cmp_eq_u32 0, 0")
        A("    s_branch L_pad0")
        A("L_back:")
        A("    s_cmp_eq_u32 0, 1")
    if hop and not hopat:
        dohop()
    A("    s_waitcnt lgkmcnt(0)")
    if diag:
        A("    s_memrealtime s[26:27]")
    vm = []
    def loads(u):
        for i in range(nld):
            a, o = addr(u, i)
            b = xb(u, i)
            A(f"    global_load_dwordx4 v[{b+4}:{b+7}], {a}, s[4:5] offset:{o} {ldf}".rstrip())
            vm.append(("x", u, i))
    def wait_for(tag):
        idx = vm.index(tag)
        n = len(vm) - 1 - idx
        A(f"    s_waitcnt vmcnt({n})")
    if tlbw == 2:
        A("    v_mov_b32 v13, s3")
        A(f"    global_load_dword v14, v13, s[10:11]"); vm.append(("t",))
    if gbfirst:
        A(f"    global_load_dwordx4 v[{G+4}:{G+7}], v2, s[6:7]"); vm.append(("g",))
        A(f"    global_load_dwordx4 v[{B+4}:{B+7}], v2, s[8:9]"); vm.append(("b",))
    loads(0)
    if tlbw == 1:
        A("    v_mov_b32 v13, s3")
        A(f"    global_load_dword v14, v13, s[10:11]"); vm.append(("t",))
    if not gbfirst:
        A(f"    global_load_dwordx4 v[{G+4}:{G+7}], v2, s[6:7]"); vm.append(("g",))
        A(f"    global_load_dwordx4 v[{B+4}:{B+7}], v2, s[8:9]"); vm.append(("b",))
    if not late:
        for u in range(1, U):
            loads(u)
    if lprio:
        A("    s_setprio 0")
    if hop and hopat:
        dohop()
    A("    v_lshlrev_b32 v5, 2, v1")
    A("    v_mov_b32 v6, 0")
    A("    v_mov_b32 v7, 0x358637bd                 ; 1e-6")
    A("    s_mov_b32 s12, 0xffff0000")
    def unpack(b):
        for k in range(4):
            src = b + 4 + k
            A(f"    v_lshlrev_b32 v{b+2*k}, 16, v{src}")
            A(f"    v_and_b32 v{b+2*k+1}, s12, v{src}")
    a = [ACC + j for j in range(8)]
    for u in range(U):
        lo = 64 * u
        for i in range(nld):
            b = xb(u, i)
            if hop and i == hop - 1:
                A(f"L_pad{2*u}:")
                A(f"    s_cbranch_scc1 L_pad{2*u+1}")
            wait_for(("x", u, i))
            if diag and u == 0 and i == 0:
                A("    s_memrealtime s[20:21]")
            if diag and u == U - 1 and i == nld - 1:
                A("    s_memrealtime s[22:23]")
            if late and u + 1 < U and i == late - 1:
                loads(u + 1)
            unpack(b)
            for k in range(4):
                x = f"v[{b+2*k}:{b+2*k+1}]"
                acc = f"v[{ACC+2*k}:{ACC+2*k+1}]"
                if i == 0:
                    A(f"    v_pk_mul_f32 {acc}, {x}, {x}")
                else:
                    A(f"    v_pk_fma_f32 {acc}, {x}, {x}, {acc}")
        if hop == 99 and u == 0:
            A("L_pad0:")
            A("    s_cbranch_scc1 L_back")
            A(f"    s_setprio {prio}" if prio else "    s_nop 0")
        elif prio:
            A(f"    s_setprio {prio}")
            A("    s_nop 0")
        else:
            A("    s_nop 1")
        for k in range(4):
            A(f"    v_permlane32_swap_b32 v{a[2*k]}, v{a[2*k+1]}")
        for k in range(4):
            A(f"    v_add_f32 v{a[2*k]}, v{a[2*k]}, v{a[2*k+1]}")
        A("    s_nop 0")
        A(f"    v_permlane16_swap_b32 v{a[0]}, v{a[2]}")
        A(f"    v_permlane16_swap_b32 v{a[4]}, v{a[6]}")
        A(f"    v_add_f32 v{a[0]}, v{a[0]}, v{a[2]}")
        A(f"    v_add_f32 v{a[4]}, v{a[4]}, v{a[6]}")
        if nw == 10:
            A("    s_nop 0")
            A(f"    v_add_f32_dpp v{a[0]}, v{a[0]}, v{a[0]} row_ror:8 row_mask:0xf bank_mask:0xf")
            A(f"    v_add_f32_dpp v{a[4]}, v{a[4]}, v{a[4]} row_ror:8 row_mask:0xf bank_mask:0xf")
        A(f"    v_sqrt_f32 v{a[0]}, v{a[0]}")
        A(f"    v_sqrt_f32 v{a[4]}, v{a[4]}")
        A("    s_nop 0")
        A(f"    v_add_f32 v8, v{a[0]}, v{a[4]}")
        A(f"    v_mov_b32 v{a[2]}, v{a[0]}")
        A(f"    v_mov_b32 v{a[6]}, v{a[4]}")
        rors = [8, 4, 2, 1] if nw == 5 else [4, 2, 1]
        for r in rors:
            A(f"    v_add_f32_dpp v8, v8, v8 row_ror:{r} row_mask:0xf bank_mask:0xf")
            A("    s_nop 1")
        A("    v_add_f32_dpp v8, v8, v8 row_bcast:15 row_mask:0xa bank_mask:0xf")
        A("    s_nop 1")
        A("    v_add_f32_dpp v8, v8, v8 row_bcast:31 row_mask:0xc bank_mask:0xf")
        A("    s_mov_b32 exec_lo, 0")
        A("    s_mov_b32 exec_hi, 0x80000000")
        A(f"    ds_write_b32 v5, v8 offset:{lo}")
        A("    s_mov_b64 exec, -1")
        A(f"    v_permlane16_swap_b32 v{a[0]}, v{a[2]}")
        A(f"    v_permlane16_swap_b32 v{a[4]}, v{a[6]}")
        for k in range(4):
            A(f"    v_mov_b32 v{a[2*k+1]}, v{a[2*k]}")
        A("    s_nop 0")
        for k in range(4):
            A(f"    v_permlane32_swap_b32 v{a[2*k]}, v{a[2*k+1]}")
        if u == 0:
            wait_for(("b",))
            unpack(G)
            unpack(B)
        for k in range(4):
            A(f"    v_pk_mul_f32 v[{T+2*k}:{T+2*k+1}], v[{G+2*k}:{G+2*k+1}], v[{ACC+2*k}:{ACC+2*k+1}]")
        A("    s_waitcnt lgkmcnt(0)")
        A("    s_barrier")
        if diag and u == 0:
            A("    s_memrealtime s[40:41]")
        if nw == 5:
            A(f"    ds_read_b128 v[8:11], v6 offset:{lo}")
            A(f"    ds_read_b32 v12, v6 offset:{lo+16}")
            A("    s_waitcnt lgkmcnt(0)")
            A("    v_pk_add_f32 v[8:9], v[8:9], v[10:11]")
            A("    v_add_f32 v8, v8, v12")
            A("    v_add_f32 v8, v8, v9")
        else:
            A(f"    ds_read_b128 v[8:11], v6 offset:{lo}")
            A(f"    ds_read_b128 v[12:15], v6 offset:{lo+16}")
            A(f"    ds_read_b64 v[{ACC}:{ACC+1}], v6 offset:{lo+32}")
            A("    s_waitcnt lgkmcnt(0)")
            A("    v_pk_add_f32 v[8:9], v[8:9], v[10:11]")
            A("    v_pk_add_f32 v[12:13], v[12:13], v[14:15]")
            A(f"    v_pk_add_f32 v[8:9], v[8:9], v[{ACC}:{ACC+1}]")
            A("    v_pk_add_f32 v[8:9], v[8:9], v[12:13]")
            A("    v_add_f32 v8, v8, v9")
        A("    v_fmamk_f32 v8, v8, 0x3acccccd, v7       ; mean + 1e-6")
        A("    v_rcp_f32 v8, v8")
        A("    s_nop 0")
        for k in range(4):
            A(f"    v_pk_fma_f32 v[{T+2*k}:{T+2*k+1}], v[{T+2*k}:{T+2*k+1}], v[8:9], 1.0 op_sel_hi:[1,0,0]")
        for i in range(nld):
            b = xb(u, i)
            if hop and hop != 99 and i == nld // 2:
                A(f"L_pad{2*u+1}:")
                A(f"    s_cbranch_scc1 " + (f"L_pad{2*u+2}" if u + 1 < U else "L_back"))
            for k in range(4):
                x = f"v[{b+2*k}:{b+2*k+1}]"
                A(f"    v_pk_fma_f32 {x}, {x}, v[{T+2*k}:{T+2*k+1}], v[{B+2*k}:{B+2*k+1}]")
            for k in range(4):
                A(f"    v_cvt_pk_bf16_f32 v{b+k}, v{b+2*k}, v{b+2*k+1}")
            ad, o = addr(u, i)
            if win and i >= win:
                A(f"    s_waitcnt vmcnt({win-1})")
            fl = stf2 if (stf2 is not None and i >= nld // 2) else stf
            A(f"    global_store_dwordx4 {ad}, v[{b}:{b+3}], s[10:11] offset:{o} {fl}".rstrip())
            vm.append(("s", u, i))
        if prio and u + 1 < U:
            A("    s_setprio 0")
    if diag:
        A("    s_memrealtime s[28:29]")
        A("    s_waitcnt vmcnt(0)")
        A("    s_memrealtime s[24:25]")
        A("    v_readfirstlane_b32 s30, v1")
        A("    s_waitcnt lgkmcnt(0)")
        names = dict(start="s18", karg="s26", first="s20", last="s22", issued="s28", end="s24", bar="s40")
        def q(dst, e):
            if e in ("0", "k2"):
                A(f"    s_mov_b32 {dst}, 0")
            elif "-" in e:
                x, y = e.split("-")
                A(f"    s_sub_u32 {dst}, {names[x]}, {names[y]}")
            else:
                A(f"    s_mov_b32 {dst}, {names[e]}")
        A(f"    s_mul_i32 s31, s2, {nw}")
        A("    s_add_u32 s31, s31, s30")
        if diag == 2:
            A("    s_lshl_b32 s31, s31, 5")
            A("    s_getreg_b32 s32, hwreg(HW_REG_HW_ID)")
            A("    s_getreg_b32 s33, hwreg(HW_REG_XCC_ID)")
            A("    s_lshl_b32 s33, s33, 28")
            A("    s_and_b32 s32, s32, 0xfffffff")
            A("    s_or_b32 s32, s32, s33")
            A("    s_mov_b64 exec, 1")
            for j, r in enumerate(["s18", "s26", "s20", "s22", "s40", "s28", "s24", "s32"]):
                A(f"    v_mov_b32 v{XB+j}, {r}")
            A("    v_mov_b32 v12, s31")
            A(f"    global_store_dwordx4 v12, v[{XB}:{XB+3}], s[16:17]")
            A(f"    global_store_dwordx4 v12, v[{XB+4}:{XB+7}], s[16:17] offset:16")
        else:
            q("s32", qa)
            q("s33", qb)
            A("    s_lshl_b32 s31, s31, 3")
            A("    s_mov_b64 exec, 1")
            A("    v_mov_b32 v10, s32")
            A("    v_mov_b32 v11, s33")
            A("    v_mov_b32 v12, s31")
            A("    global_store_dwordx2 v12, v[10:11], s[16:17]")
    A("L_end:")
    A("    s_endpgm")
    if diag == 1:
        nrec = grid * nw
        aop = "max" if amax else "min"
        bop = "min" if bmin else "max"
        A(".globl diag_kernel")
        A(".p2align 8")
        A(".type diag_kernel,@function")
        A("diag_kernel:")
        A("    s_memrealtime s[18:19]")
        A("    s_load_dwordx4 s[4:7], s[0:1], 32")
        A("    s_cmp_lg_u32 s2, 0")
        A("    s_cbranch_scc1 L_end2")
        A("    v_lshlrev_b32 v1, 3, v0")
        A("    s_waitcnt lgkmcnt(0)")
        A("    global_load_dwordx2 v[2:3], v1, s[6:7]")
        A("    s_waitcnt vmcnt(0)")
        A(f"    s_mov_b32 s8, {nrec//64 - 1}")
        A("L_rec:")
        A("    v_add_u32 v1, 512, v1")
        A("    global_load_dwordx2 v[4:5], v1, s[6:7]")
        A("    s_waitcnt vmcnt(0)")
        A(f"    v_{aop}_u32 v2, v2, v4")
        A(f"    v_{bop}_u32 v3, v3, v5")
        A("    s_sub_u32 s8, s8, 1")
        A("    s_cmp_lg_u32 s8, 0")
        A("    s_cbranch_scc1 L_rec")
        A("    s_nop 1")
        A("    v_readlane_b32 s10, v2, 0")
        A("    v_readlane_b32 s11, v3, 0")
        for l in range(1, 64):
            A(f"    v_readlane_b32 s12, v2, {l}")
            A(f"    v_readlane_b32 s13, v3, {l}")
            A("    s_nop 1")
            A(f"    s_{aop}_u32 s10, s10, s12")
            A(f"    s_{bop}_u32 s11, s11, s13")
        if qb == "k2":
            A("    s_mov_b32 s11, s18")
        A("    s_sub_u32 s34, s11, s10")
        A("    v_mov_b32 v10, s34")
        A("    v_mov_b32 v6, 0")
        A("    global_store_dword v6, v10, s[4:5]")
        A("    s_min_u32 s34, s34, 5000")
        if qs:
            A(f"    s_lshr_b32 s34, s34, {qs}")
        A(f"    s_mul_i32 s34, s34, {K}")
        A("    s_add_u32 s34, s34, 3000")
        A("L_spin:")
        A("    s_memrealtime s[38:39]")
        A("    s_waitcnt lgkmcnt(0)")
        A("    s_sub_u32 s35, s38, s18")
        A("    s_cmp_lt_u32 s35, s34")
        A("    s_cbranch_scc1 L_spin")
        A("L_end2:")
        A("    s_endpgm")
    A('.section .rodata,"a"')
    A(".p2align 6")
    A(".amdhsa_kernel standalone__grn__sampling_kernel")
    A(f"  .amdhsa_next_free_vgpr {NV}")
    A(f"  .amdhsa_next_free_sgpr {48 if diag else 16}")
    A(f"  .amdhsa_accum_offset {(NV+3)//4*4}")
    A("  .amdhsa_group_segment_fixed_size 0")
    A("  .amdhsa_kernarg_size 48")
    A("  .amdhsa_user_sgpr_count 2")
    A("  .amdhsa_user_sgpr_kernarg_segment_ptr 1")
    A("  .amdhsa_system_sgpr_workgroup_id_x 1")
    if denorm:
        A("  .amdhsa_float_denorm_mode_32 3")
    A(".end_amdhsa_kernel")
    if diag == 1:
        A(".p2align 6")
        A(".amdhsa_kernel diag_kernel")
        A("  .amdhsa_next_free_vgpr 16")
        A("  .amdhsa_next_free_sgpr 48")
        A("  .amdhsa_accum_offset 16")
        A("  .amdhsa_group_segment_fixed_size 0")
        A("  .amdhsa_kernarg_size 48")
        A("  .amdhsa_user_sgpr_count 2")
        A("  .amdhsa_user_sgpr_kernarg_segment_ptr 1")
        A("  .amdhsa_system_sgpr_workgroup_id_x 1")
        A(".end_amdhsa_kernel")
    return "\n".join(L) + "\n"

if __name__ == "__main__":
    out = sys.argv[1]
    kw = {}
    for a in sys.argv[2:]:
        k, v = a.split("=", 1)
        v = v.replace("+", " ")
        kw[k] = int(v) if (v.isdigit() and k not in ("qa", "qb")) else v
    open(out, "w").write(gen(**kw))
```

```python
import sys, re
src = open(sys.argv[1]).read()
K = int(sys.argv[3]) if len(sys.argv) > 3 else 20
m = re.search(r"; @launch (grid=\S+ block=\S+ lds=\d+)", src)
new = (f"; @launch kernel=pre_kernel grid=(1,1,1) block=(64,1,1) lds=0\n"
       f"; @launch kernel=standalone__grn__sampling_kernel {m.group(1)}\n"
       f"; @launch kernel=post_kernel grid=(1,1,1) block=(64,1,1) lds=0")
src = src.replace(m.group(0), new)
code = f"""
.p2align 12
.globl pre_kernel
.p2align 8
.type pre_kernel,@function
pre_kernel:
    s_load_dwordx2 s[6:7], s[0:1], 40
    s_cmp_lg_u32 s2, 0
    s_cbranch_scc1 L_endp
    s_waitcnt lgkmcnt(0)
    s_memrealtime s[18:19]
    v_mov_b32 v1, 0
    s_waitcnt lgkmcnt(0)
    v_mov_b32 v2, s18
    global_store_dword v1, v2, s[6:7] sc0 sc1
L_endp:
    s_endpgm
.globl post_kernel
.p2align 8
.type post_kernel,@function
post_kernel:
    s_memrealtime s[18:19]
    s_load_dwordx4 s[4:7], s[0:1], 32
    s_cmp_lg_u32 s2, 0
    s_cbranch_scc1 L_endq
    v_mov_b32 v1, 0
    s_waitcnt lgkmcnt(0)
    global_load_dword v2, v1, s[6:7] sc0 sc1
    s_waitcnt vmcnt(0)
    v_readfirstlane_b32 s10, v2
    s_nop 3
    s_sub_u32 s34, s18, s10
    v_mov_b32 v10, s34
    global_store_dword v1, v10, s[4:5]
    s_min_u32 s34, s34, 5000
    s_mul_i32 s34, s34, {K}
    s_add_u32 s34, s34, 1000
L_spinq:
    s_memrealtime s[38:39]
    s_waitcnt lgkmcnt(0)
    s_sub_u32 s35, s38, s18
    s_cmp_lt_u32 s35, s34
    s_cbranch_scc1 L_spinq
L_endq:
    s_endpgm
"""
src = src.replace('.section .rodata,"a"', code + '.section .rodata,"a"', 1)
for k in ("pre_kernel", "post_kernel"):
    src += f""".p2align 6
.amdhsa_kernel {k}
  .amdhsa_next_free_vgpr 16
  .amdhsa_next_free_sgpr 48
  .amdhsa_accum_offset 16
  .amdhsa_group_segment_fixed_size 0
  .amdhsa_kernarg_size 48
  .amdhsa_user_sgpr_count 2
  .amdhsa_user_sgpr_kernarg_segment_ptr 1
  .amdhsa_system_sgpr_workgroup_id_x 1
.end_amdhsa_kernel
"""
open(sys.argv[2], "w").write(src)
```

```python
import sys

HEADER = """; Kernarg layout for this problem (48 bytes, ptrs only, base s[0:1]):
"""

def gen(ldf="nt", stf="nt", pat="col2", colrot=1, perm=0, a1=1, a2=1, mis=0, gb=0, hop=1, rsh=3, tlbw=0, prio=0, lprio=0, slim=0, pn=0, pn2=0):
    L = []
    A = L.append
    nld = 8
    A(HEADER.rstrip())
    A("; @launch grid=(512,1,1) block=(320,1,1) lds=1344")
    A(""";
;   wave  -> a 128-channel column slice (256 B per row); lane -> (row group = lane>>4, 8 channels = lane&15)
;   phase 2: out = x * (1 + g * gx / (mean(gx) + 1e-6)) + b, packed to bf16, 8 x 16-B stores per lane""")
    A('.amdgcn_target "amdgcn-amd-amdhsa--gfx950"')
    A(".text")
    A(".globl standalone__grn__sampling_kernel")
    A(".p2align 12                                  ; whole kernel inside one 4-KiB page (instruction prefetch stops at page ends)")
    A(".p2align 8")
    A(".type standalone__grn__sampling_kernel,@function")
    A("standalone__grn__sampling_kernel:")
    A("    s_load_dwordx8 s[4:11], s[0:1], 0        ; s[4:5]=x s[6:7]=g s[8:9]=b s[10:11]=out")
    A("    s_cmp_ge_u32 s2, 512")
    A("    s_cbranch_scc1 L_end")
    if perm == 6:
        A("    s_sub_u32 s13, 767, s2")
        A("    s_cmp_lt_u32 s2, 256")
        A("    s_cselect_b32 s3, s2, s13")
        A("    s_mul_i32 s3, s3, 40960")
    elif perm == 9:
        A("    s_sub_u32 s3, 511, s2")
        A("    s_mul_i32 s3, s3, 40960")
    elif perm == 3:
        A("    s_and_b32 s3, s2, 7")
        A("    s_lshl_b32 s3, s3, 6")
        A("    s_lshr_b32 s13, s2, 3")
        A("    s_add_u32 s3, s3, s13")
        A("    s_mul_i32 s3, s3, 40960")
    else:
        A("    s_mul_i32 s3, s2, 40960")
    A("    v_lshrrev_b32 v1, 6, v0")
    A("    v_and_b32 v2, 15, v0")
    A("    v_lshlrev_b32 v2, 4, v2")
    if colrot:
        A(f"    s_lshr_b32 s13, s2, {rsh}")
        A("    s_mul_i32 s14, s13, 205")
        A("    s_lshr_b32 s14, s14, 10")
        A("    s_mul_i32 s14, s14, 5")
        A("    s_sub_u32 s13, s13, s14                  ; rotation 0..4")
        A("    v_add_u32 v4, s13, v1")
        A("    v_subrev_u32 v8, 5, v4")
        A("    v_min_u32 v4, v4, v8                     ; column slice = (wave + rotation) mod 5")
        A("    v_lshl_add_u32 v2, v4, 8, v2             ; column byte offset")
    else:
        A("    v_lshl_add_u32 v2, v1, 8, v2             ; column byte offset")
    A("    v_bfe_u32 v3, v0, 4, 2")
    AD = 16
    if pat == "col":
        A("    v_mul_u32_u24 v3, 10240, v3")
        A(f"    v_add3_u32 v{AD}, v3, v2, s3")
        A(f"    v_add_u32 v{AD+1}, 5120, v{AD}")
        nad = 2
        def addr(i):
            return f"v{AD+i//4}", 1280 * (i % 4)
    else:
        A("    v_mul_u32_u24 v3, 1280, v3")
        A("    s_add_u32 s3, s3, 2560")
        A(f"    v_add3_u32 v{AD}, v3, v2, s3")
        for h in range(1, 4):
            A(f"    v_add_u32 v{AD+h}, {10240*h}, v{AD}")
        nad = 4
        def addr(i):
            return f"v{AD+i//2}", (2560 if i % 2 else -2560)
    XB = 20
    ACC = XB + 64
    G = ACC + 8
    B = G + 8
    NV = B + 8
    def consts():
        A("    v_and_b32 v8, 63, v0")
        A("    v_lshlrev_b32 v5, 2, v1")
        A("    v_lshl_add_u32 v9, v0, 2, 32")
        A("    v_cmp_eq_u32 vcc, 63, v8")
        A("    v_mov_b32 v6, 0")
        A("    v_mov_b32 v7, 0x358637bd                 ; 1e-6")
        A("    s_mov_b32 s12, 0xffff0000")
        A("    v_cndmask_b32_e64 v5, v9, v5, vcc")
    if not slim:
        consts()
    if tlbw:
        A("    v_mov_b32 v13, s3")
    if lprio:
        A(f"    s_setprio {lprio}")
    for _ in range(pn):
        A("    v_mov_b32 v12, v12")
    if pn2:
        A("    s_cmp_lt_u32 s2, 256")
        A("    s_cbranch_scc1 L_nd")
        A(f"    s_sleep {pn2}")
        A("L_nd:")
    if hop:
        A("    s_cmp_eq_u32 0, 0")
        A("    s_branch L_pad")
        A("L_back:")
        A("    s_cmp_eq_u32 0, 1")
    A("    s_waitcnt lgkmcnt(0)")
    if a1:
        A(".p2align 3")
    vm = []
    def gbl():
        A(f"    global_load_dwordx4 v[{G+4}:{G+7}], v2, s[6:7]"); vm.append("g")
        A(f"    global_load_dwordx4 v[{B+4}:{B+7}], v2, s[8:9]"); vm.append("b")
    if tlbw == 2:
        A("    global_load_dword v14, v13, s[10:11]"); vm.append("t")
    for i in range(nld):
        if i == gb:
            gbl()
        a, o = addr(i)
        b = XB + 8 * i
        A(f"    global_load_dwordx4 v[{b+4}:{b+7}], {a}, s[4:5] offset:{o} {ldf}".rstrip())
        vm.append(i)
    if gb >= nld:
        gbl()
    if tlbw == 1:
        A("    global_load_dword v14, v13, s[10:11]"); vm.append("t")
    if lprio:
        A("    s_setprio 0")
        A("    s_nop 0")
    if slim:
        consts()
    def unpack(b, wide=False):
        for k in range(4):
            src = b + 4 + k
            A(f"    v_lshlrev_b32 v{b+2*k}, 16, v{src}")
            if wide and k == 0:
                A(f"    v_and_b32 v{b+2*k+1}, 0xffff0000, v{src}")
            else:
                A(f"    v_and_b32 v{b+2*k+1}, s12, v{src}")
    gbdone = False
    for i in range(nld):
        b = XB + 8 * i
        if i == gb and not gbdone:
            A(f"    s_waitcnt vmcnt({len(vm)-1-vm.index('b')})")
            unpack(G, wide=bool(a1))
            unpack(B)
            gbdone = True
        A(f"    s_waitcnt vmcnt({len(vm)-1-vm.index(i)})")
        unpack(b, wide=bool(a1))
        for k in range(4):
            x = f"v[{b+2*k}:{b+2*k+1}]"
            acc = f"v[{ACC+2*k}:{ACC+2*k+1}]"
            if i == 0:
                A(f"    v_pk_mul_f32 {acc}, {x}, {x}")
            else:
                A(f"    v_pk_fma_f32 {acc}, {x}, {x}, {acc}")
    a = [ACC + j for j in range(8)]
    e64 = "_e64" if a2 else ""
    if hop:
        A("L_pad:")
        A("    s_cbranch_scc1 L_back")
    else:
        A("    s_nop 0")
    A(f"    v_permlane32_swap_b32 v{a[0]}, v{a[2]}")
    A(f"    v_permlane32_swap_b32 v{a[1]}, v{a[3]}")
    A(f"    v_permlane32_swap_b32 v{a[4]}, v{a[6]}")
    A(f"    v_permlane32_swap_b32{e64} v{a[5]}, v{a[7]}")
    A(f"    v_pk_add_f32 v[{a[0]}:{a[1]}], v[{a[0]}:{a[1]}], v[{a[2]}:{a[3]}]")
    A(f"    v_pk_add_f32 v[{a[4]}:{a[5]}], v[{a[4]}:{a[5]}], v[{a[6]}:{a[7]}]")
    if prio:
        A(f"    s_setprio {prio}")
        A("    s_nop 0")
        A("    s_nop 0")
    else:
        A("    s_nop 1")
    A(f"    v_permlane16_swap_b32 v{a[0]}, v{a[4]}")
    A(f"    v_permlane16_swap_b32{e64} v{a[1]}, v{a[5]}")
    A(f"    v_pk_add_f32 v[{a[0]}:{a[1]}], v[{a[0]}:{a[1]}], v[{a[4]}:{a[5]}]")
    A(f"    v_sqrt_f32 v{a[0]}, v{a[0]}")
    A(f"    v_sqrt_f32 v{a[1]}, v{a[1]}")
    A("    s_nop 0")
    A(f"    v_add_f32 v8, v{a[0]}, v{a[1]}")
    fill = [
        f"v_mov_b32 v{a[4]}, v{a[0]}", f"v_mov_b32 v{a[5]}, v{a[1]}",
        f"v_permlane16_swap_b32 v{a[0]}, v{a[4]}", f"v_permlane16_swap_b32 v{a[1]}, v{a[5]}",
        f"v_mov_b32 v{a[2]}, v{a[0]}", f"v_mov_b32 v{a[6]}, v{a[4]}",
        f"v_mov_b32 v{a[3]}, v{a[1]}", f"v_mov_b32 v{a[7]}, v{a[5]}",
        f"v_permlane32_swap_b32 v{a[0]}, v{a[2]}", f"v_permlane32_swap_b32 v{a[4]}, v{a[6]}",
        f"v_permlane32_swap_b32 v{a[1]}, v{a[3]}", f"v_permlane32_swap_b32 v{a[5]}, v{a[7]}",
    ]
    steps = ["row_ror:8 row_mask:0xf", "row_ror:4 row_mask:0xf", "row_ror:2 row_mask:0xf", "row_ror:1 row_mask:0xf",
             "row_bcast:15 row_mask:0xa", "row_bcast:31 row_mask:0xc"]
    for j, s in enumerate(steps):
        A("    " + fill[2 * j])
        A("    " + fill[2 * j + 1])
        A(f"    v_add_f32_dpp v8, v8, v8 {s} bank_mask:0xf")
    A("    ds_write_b32 v5, v8")
    if not gbdone:
        A("    s_waitcnt vmcnt(0)")
        unpack(G, wide=bool(a2))
        unpack(B)
    A("    s_waitcnt lgkmcnt(0)")
    A("    s_barrier")
    if a2:
        A(".p2align 3")
    if mis:
        A("    s_nop 0")
    A("    ds_read_b128 v[8:11], v6")
    A("    ds_read_b32 v12, v6 offset:16")
    for k in range(4):
        A(f"    v_pk_mul_f32 v[{G+2*k}:{G+2*k+1}], v[{G+2*k}:{G+2*k+1}], v[{ACC+2*k}:{ACC+2*k+1}]   ; g * gx")
    A("    s_waitcnt lgkmcnt(0)")
    A("    v_add_f32 v8, v8, v12")
    A("    v_pk_add_f32 v[8:9], v[8:9], v[10:11]")
    A(f"    v_add_f32{e64} v8, v8, v9")
    A("    v_fmamk_f32 v8, v8, 0x3acccccd, v7       ; mean + 1e-6")
    A("    v_rcp_f32 v8, v8")
    A("    s_nop 0")
    for k in range(4):
        A(f"    v_pk_fma_f32 v[{G+2*k}:{G+2*k+1}], v[{G+2*k}:{G+2*k+1}], v[8:9], 1.0 op_sel_hi:[1,0,0]")
    for i in range(nld):
        b = XB + 8 * i
        for k in range(4):
            x = f"v[{b+2*k}:{b+2*k+1}]"
            A(f"    v_pk_fma_f32 {x}, {x}, v[{G+2*k}:{G+2*k+1}], v[{B+2*k}:{B+2*k+1}]")
        for k in range(4):
            A(f"    v_cvt_pk_bf16_f32 v{b+k}, v{b+2*k}, v{b+2*k+1}")
        ad, o = addr(i)
        A(f"    global_store_dwordx4 {ad}, v[{b}:{b+3}], s[10:11] offset:{o} {stf}".rstrip())
    A("L_end:")
    A("    s_endpgm")
    A('.section .rodata,"a"')
    A(".p2align 6")
    A(".amdhsa_kernel standalone__grn__sampling_kernel")
    A(f"  .amdhsa_next_free_vgpr {NV}")
    A("  .amdhsa_next_free_sgpr 16")
    A(f"  .amdhsa_accum_offset {(NV+3)//4*4}")
    A("  .amdhsa_group_segment_fixed_size 0")
    A("  .amdhsa_kernarg_size 48")
    A("  .amdhsa_user_sgpr_count 2")
    A("  .amdhsa_user_sgpr_kernarg_segment_ptr 1")
    A("  .amdhsa_system_sgpr_workgroup_id_x 1")
    A("  .amdhsa_float_denorm_mode_32 3")
    A(".end_amdhsa_kernel")
    return "\n".join(L) + "\n"

if __name__ == "__main__":
    out = sys.argv[1]
    kw = {}
    for a in sys.argv[2:]:
        k, v = a.split("=", 1)
        v = v.replace("+", " ")
        kw[k] = int(v) if v.isdigit() else v
    open(out, "w").write(gen(**kw))
```
